```python
import torch

def _softmax(x, axis=-1):
    return torch.softmax(x, dim=axis)
def _gelu(x):
    return torch.nn.functional.gelu(x, approximate="tanh")
def _silu(x):
    return torch.nn.functional.silu(x)
def _sigmoid(x):
    return torch.sigmoid(x)
def _layernorm(x, axis=-1, eps=1e-5):
    m = x.mean(dim=axis, keepdim=True)
    v = x.var(dim=axis, keepdim=True, unbiased=False)
    return (x - m) / torch.sqrt(v + eps)
def _scatter_add(tgt, idx, src, axis=0):
    return tgt.clone().index_add_(axis, idx, src)
def _segment_sum(src, seg, n):
    out = torch.zeros((n,) + src.shape[1:], dtype=src.dtype)
    return out.index_add_(0, seg, src)
def _pad(x, pw):
    flat = tuple(v for pair in reversed(pw) for v in pair)
    return torch.nn.functional.pad(x, flat)

kernel_name = 'recurrent_scan__mha_block_cached__geglu_ffn__decode'

def setup_inputs():

    _w = (lambda a: (lambda t: t.to(torch.bfloat16) if t.is_floating_point() else t)(torch.as_tensor(a)))
    def _A_setup():
        B, Sq, D = 2, 1, 512
        H, Sk, Dh = 32, 16384, 128
        return {
            "x": _w((lambda *s: torch.randn(*s, dtype=torch.bfloat16) * 0.05)(B, Sq, D)),
            "k_cache": _w((lambda *s: torch.randn(*s, dtype=torch.bfloat16) * 1.6)(B, H, Sk, Dh)),
            "v_cache": _w((lambda *s: torch.randn(*s, dtype=torch.bfloat16) * 0.2)(B, H, Sk, Dh)),
            "wq": _w((lambda *s: torch.randn(*s, dtype=torch.bfloat16) * 1.6)(D, H * Dh) * (D ** -0.5)),
            "wo": _w((lambda *s: torch.randn(*s, dtype=torch.bfloat16) * 0.2)(H * Dh, D) * ((H * Dh) ** -0.5)),
        }
    _A_in = _A_setup()

    def _B_setup():
        B, S, D, F = 2, 1, 512, 1376
        return {
            "x": _w((lambda *s: torch.randn(*s, dtype=torch.bfloat16) * 0.05)(B, S, D)),
            "w_gate": _w((lambda *s: torch.randn(*s, dtype=torch.bfloat16) * 0.1)(D, F)),
            "w_up": _w((lambda *s: torch.randn(*s, dtype=torch.bfloat16) * 0.1)(D, F)),
            "w_down": _w((lambda *s: torch.randn(*s, dtype=torch.bfloat16) * 0.1)(F, D)),
        }
    _B_in = _B_setup()

    return {
        "A_x": _A_in["x"],
        "A_k_cache": _A_in["k_cache"],
        "A_v_cache": _A_in["v_cache"],
        "A_wq": _A_in["wq"],
        "A_wo": _A_in["wo"],
        "B_x": _B_in["x"],
        "B_w_gate": _B_in["w_gate"],
        "B_w_up": _B_in["w_up"],
        "B_w_down": _B_in["w_down"],
    }

def reference(A_x, A_k_cache, A_v_cache, A_wq, A_wo, B_x, B_w_gate, B_w_up, B_w_down):
    def _A_ref(x, k_cache, v_cache, wq, wo):
        B, Sq, D = x.shape
        H, Dh = 32, 128
        q = (lambda x, *d: x.permute(*d))((x @ wq).reshape(B, Sq, H, Dh), 0, 2, 1, 3)
        scores = torch.einsum("bhqd,bhkd->bhqk", q, k_cache) * (Dh ** -0.5)
        p = _softmax(scores, axis=-1)
        o = torch.einsum("bhqk,bhkd->bhqd", p, v_cache)
        return (lambda x, *d: x.permute(*d))(o, 0, 2, 1, 3).reshape(B, Sq, H * Dh) @ wo

    def _B_ref(x, w_gate, w_up, w_down):
        return (_gelu(x @ w_gate) * (x @ w_up)) @ w_down

    x = A_x
    xn = _layernorm(x, axis=-1)
    s = _A_ref(xn, A_k_cache, A_v_cache, A_wq, A_wo)
    g = _silu(_B_ref(xn, B_w_gate, B_w_up, B_w_down))
    return x + s * g
```

```python
import sys
NT = " nt" if (len(sys.argv) > 1 and "nt" in sys.argv[1:]) else ""
out = []
def e(s):
    import re as _re
    if s.startswith("buffer_") or s.startswith("global_"):
        m = _re.search(r"offset:(\d+)", s)
        assert not m or int(m.group(1)) <= 4095, s
    if s.startswith("ds_"):
        m = _re.search(r"offset:(\d+)", s)
        assert not m or int(m.group(1)) <= 65535, s
    out.append("    " + s)
def lab(s): out.append(s + ":")
def nop(n): e(f"s_nop {n-1}")

L2E = "0x3fb8aa3b"
SCALE = "0x3db504f3"
MAIN = "recurrent_scan__mha_block_cached__geglu_ffn__decode_kernel"

LDS_XN = 0
LDS_RED = 4096
LDS_RED2 = 36864
LDS_M = 40960
LDS_L = 41216
LDS_A_SIZE = 41472
WS_ACC = 0
WS_ML = 0x20000
WS_H = 0x21000

def v(i): return f"v{i}"
def vr(i, n): return f"v[{i}:{i+n-1}]"

def bf16r(dst, src, tmp):
    e(f"v_cvt_pk_bf16_f32 {v(tmp)}, {v(src)}, {v(src)}")
    e(f"v_lshlrev_b32 {v(dst)}, 16, {v(tmp)}")

def dpp_reduce(regs, op="v_add_f32"):
    modes = ["quad_perm:[1,0,3,2]", "quad_perm:[2,3,0,1]", "row_half_mirror", "row_mirror"]
    for m in modes:
        if len(regs) < 3: nop(3)
        for r in regs:
            e(f"{op}_dpp {v(r)}, {v(r)}, {v(r)} {m} row_mask:0xf bank_mask:0xf")

def wave_total(reg, tmp, op="v_add_f32", s0=52):
    nop(2)
    for i in range(4):
        e(f"v_readlane_b32 s{s0+i}, {v(reg)}, {16*i}")
    nop(2)
    e(f"v_mov_b32 {v(tmp)}, s{s0}")
    e(f"{op} {v(tmp)}, s{s0+1}, {v(tmp)}")
    e(f"{op} {v(tmp)}, s{s0+2}, {v(tmp)}")
    e(f"{op} {v(reg)}, s{s0+3}, {v(tmp)}")

def layernorm(X, F, T, lds_addr_v, lds_off):
    for k in range(4):
        e(f"v_lshlrev_b32 {v(F+2*k)}, 16, {v(X+k)}")
        e(f"v_and_b32 {v(F+2*k+1)}, 0xffff0000, {v(X+k)}")
    s, t1, t2, mean, var = T, T+1, T+2, T+3, T+4
    e(f"v_add_f32 {v(s)}, {v(F)}, {v(F+1)}")
    e(f"v_add_f32 {v(t1)}, {v(F+2)}, {v(F+3)}")
    e(f"v_add_f32 {v(t2)}, {v(F+4)}, {v(F+5)}")
    e(f"v_add_f32 {v(mean)}, {v(F+6)}, {v(F+7)}")
    e(f"v_add_f32 {v(s)}, {v(s)}, {v(t1)}")
    e(f"v_add_f32 {v(t2)}, {v(t2)}, {v(mean)}")
    e(f"v_add_f32 {v(s)}, {v(s)}, {v(t2)}")
    dpp_reduce([s])
    wave_total(s, t1)
    e(f"v_mul_f32 {v(mean)}, 0x3b000000, {v(s)}")
    e(f"v_sub_f32 {v(t1)}, {v(F)}, {v(mean)}")
    e(f"v_mul_f32 {v(s)}, {v(t1)}, {v(t1)}")
    for k in range(1, 8):
        e(f"v_sub_f32 {v(t1)}, {v(F+k)}, {v(mean)}")
        e(f"v_fma_f32 {v(s)}, {v(t1)}, {v(t1)}, {v(s)}")
    dpp_reduce([s])
    wave_total(s, t1)
    e(f"v_mul_f32 {v(var)}, 0x3b000000, {v(s)}")
    bf16r(mean, mean, t1)
    bf16r(var, var, t1)
    e(f"v_add_f32 {v(var)}, 0x3727c5ac, {v(var)}")
    bf16r(var, var, t1)
    e(f"v_sqrt_f32 {v(var)}, {v(var)}")
    nop(1)
    bf16r(var, var, t1)
    e(f"v_rcp_f32 {v(var)}, {v(var)}")
    for k in range(8):
        e(f"v_sub_f32 {v(F+k)}, {v(F+k)}, {v(mean)}")
    for k in range(0, 8, 2):
        e(f"v_cvt_pk_bf16_f32 {v(t1)}, {v(F+k)}, {v(F+k+1)}")
        e(f"v_lshlrev_b32 {v(F+k)}, 16, {v(t1)}")
        e(f"v_and_b32 {v(F+k+1)}, 0xffff0000, {v(t1)}")
    for k in range(8):
        e(f"v_mul_f32 {v(F+k)}, {v(F+k)}, {v(var)}")
    for k in range(0, 8, 2):
        e(f"v_cvt_pk_bf16_f32 {v(t1)}, {v(F+k)}, {v(F+k+1)}")
        e(f"v_lshlrev_b32 {v(F+k)}, 16, {v(t1)}")
        e(f"v_and_b32 {v(F+k+1)}, 0xffff0000, {v(t1)}")
    e(f"ds_write_b128 {v(lds_addr_v)}, {vr(F,4)} offset:{lds_off}")
    e(f"ds_write_b128 {v(lds_addr_v)}, {vr(F+4,4)} offset:{lds_off+16}")

def gemv8(W, XN, XL, ACC):
    for j in range(8):
        e(f"v_lshrrev_b32 {v(XL+j)}, 16, {v(XN+j)}")
    for j in range(8):
        for k in range(4):
            c0 = "0" if j == 0 else v(ACC+2*k)
            c1 = "0" if j == 0 else v(ACC+2*k+1)
            e(f"v_dot2_f32_bf16 {v(ACC+2*k)}, {v(W+4*j+k)}, {v(XL+j)}, {c0}")
            e(f"v_dot2_f32_bf16 {v(ACC+2*k+1)}, {v(W+4*j+k)}, {v(XN+j)}, {c1}")
    nop(4)

def reduce64(ACC, vaddr_w, vaddr_r, vaddr_r2, T):
    e(f"ds_write_b128 {v(vaddr_w)}, {vr(ACC,4)} offset:{LDS_RED}")
    e(f"ds_write_b128 {v(vaddr_w)}, {vr(ACC+4,4)} offset:{LDS_RED+16}")
    e("s_waitcnt lgkmcnt(0)")
    e("s_barrier")
    for j in range(8):
        e(f"ds_read_b32 {v(T+j)}, {v(vaddr_r)} offset:{LDS_RED+512*j}")
    e("s_waitcnt lgkmcnt(0)")
    e(f"v_add_f32 {v(T)}, {v(T)}, {v(T+1)}")
    e(f"v_add_f32 {v(T+2)}, {v(T+2)}, {v(T+3)}")
    e(f"v_add_f32 {v(T+4)}, {v(T+4)}, {v(T+5)}")
    e(f"v_add_f32 {v(T+6)}, {v(T+6)}, {v(T+7)}")
    e(f"v_add_f32 {v(T)}, {v(T)}, {v(T+2)}")
    e(f"v_add_f32 {v(T+4)}, {v(T+4)}, {v(T+6)}")
    e(f"v_add_f32 {v(T)}, {v(T)}, {v(T+4)}")
    e(f"ds_write_b32 {v(vaddr_r2)}, {v(T)} offset:{LDS_RED2}")
    e("s_waitcnt lgkmcnt(0)")
    e("s_barrier")

def kernel_a():
    KR, VR, WR = 8, 40, 72
    Q, ACC, M, L, SC = 104, 108, 116, 117, 118
    T0 = 126
    out.append(f".globl {MAIN}")
    out.append(".p2align 8")
    out.append(f".type {MAIN},@function")
    lab(MAIN)
    e("s_cmp_ge_u32 s2, 256")
    e("s_cbranch_scc1 KA_END")
    e("s_load_dwordx8 s[4:11], s[0:1], 0")
    e("s_load_dwordx4 s[12:15], s[0:1], 48")
    e("s_load_dwordx2 s[16:17], s[0:1], 88")
    e("v_and_b32 v1, 63, v0")
    e("v_lshrrev_b32 v4, 6, v0")
    nop(1)
    e("v_readfirstlane_b32 s43, v4")
    e("s_and_b32 s46, s2, 7")
    e("s_lshr_b32 s47, s2, 3")
    e("s_lshr_b32 s48, s47, 3")
    e("s_lshl_b32 s40, s46, 2")
    e("s_add_u32 s40, s40, s48")
    e("s_lshr_b32 s41, s47, 2")
    e("s_and_b32 s41, s41, 1")
    e("s_and_b32 s42, s47, 3")
    e("s_lshl_b32 s49, s41, 5")
    e("s_add_u32 s49, s49, s40")
    e("s_lshl_b32 s50, s49, 2")
    e("s_add_u32 s50, s50, s42")
    e("s_lshl_b32 s51, s50, 20")
    e("v_lshlrev_b32 v5, 4, v1")
    e("v_lshrrev_b32 v4, 4, v0")
    e("v_and_b32 v7, 15, v0")
    e("v_lshlrev_b32 v6, 16, v4")
    e("v_lshl_add_u32 v6, v7, 4, v6")
    e("s_lshl_b32 s44, s43, 13")
    e("v_add_u32 v2, s44, v5")
    e("v_add_u32 v3, 0x1000, v2")
    e("s_waitcnt lgkmcnt(0)")
    e("s_add_u32 s20, s6, s51"); e("s_addc_u32 s21, s7, 0"); e("s_mov_b32 s22, 0x100000"); e("s_mov_b32 s23, 0x20000")
    e("s_add_u32 s24, s8, s51"); e("s_addc_u32 s25, s9, 0"); e("s_mov_b32 s26, 0x100000"); e("s_mov_b32 s27, 0x20000")
    e("s_mov_b32 s28, s10"); e("s_mov_b32 s29, s11"); e("s_mov_b32 s30, 0x400000"); e("s_mov_b32 s31, 0x20000")
    e("s_mov_b32 s32, s4"); e("s_mov_b32 s33, s5"); e("s_mov_b32 s34, 2048"); e("s_mov_b32 s35, 0x20000")
    e("s_mov_b32 s36, s16"); e("s_mov_b32 s37, s17"); e("s_mov_b32 s38, 0x40000"); e("s_mov_b32 s39, 0x20000")
    e(f"buffer_load_dwordx4 {vr(SC,4)}, v5, s[32:35], 0 offen")
    e(f"buffer_load_dwordx4 {vr(SC+4,4)}, v5, s[32:35], 0 offen offset:1024")
    e("s_lshl_b32 s45, s40, 8")
    for j in range(8):
        e(f"buffer_load_dwordx4 {vr(WR+4*j,4)}, v6, s[28:31], s45 offen")
        if j < 7: e("s_add_u32 s45, s45, 0x2000")
    e("s_mov_b32 s44, 0")
    def kvload(base, srd):
        for j in range(8):
            vo = "v2" if j < 4 else "v3"
            e(f"buffer_load_dwordx4 {vr(base+4*j,4)}, {vo}, {srd}, s44 offen offset:{(j%4)*1024}{NT}")
    kvload(KR, "s[20:23]")
    kvload(VR, "s[24:27]")
    e("v_lshlrev_b32 v4, 5, v1")
    e("s_waitcnt vmcnt(24)")
    layernorm(SC, 110, 104, 4, LDS_XN)
    layernorm(SC+4, 110, 104, 4, LDS_XN+2048)
    e("v_lshrrev_b32 v4, 4, v0")
    e("v_lshlrev_b32 v4, 5, v4")
    e("s_lshl_b32 s46, s41, 11")
    e(f"v_add_u32 {v(T0)}, s46, v4")
    e("s_waitcnt lgkmcnt(0)")
    e(f"ds_read_b128 {vr(SC,4)}, {v(T0)} offset:{LDS_XN}")
    e(f"ds_read_b128 {vr(SC+4,4)}, {v(T0)} offset:{LDS_XN+16}")
    e("v_lshrrev_b32 v4, 4, v0")
    e("v_lshlrev_b32 v4, 9, v4")
    e("v_lshl_add_u32 v4, v7, 5, v4")
    e("v_lshrrev_b32 v5, 7, v0")
    e("v_lshlrev_b32 v5, 12, v5")
    e(f"v_and_b32 {v(T0+1)}, 127, v0")
    e(f"v_lshl_add_u32 v5, {v(T0+1)}, 2, v5")
    e("v_lshlrev_b32 v6, 2, v0")
    e("s_waitcnt vmcnt(16) lgkmcnt(0)")
    XLl = [104,105,106,107,116,117,126,127]
    def gemv8l(W, XN, XLs, ACC):
        for j in range(8):
            e(f"v_lshrrev_b32 {v(XLs[j])}, 16, {v(XN+j)}")
        for j in range(8):
            for k in range(4):
                c0 = "0" if j == 0 else v(ACC+2*k)
                c1 = "0" if j == 0 else v(ACC+2*k+1)
                e(f"v_dot2_f32_bf16 {v(ACC+2*k)}, {v(W+4*j+k)}, {v(XLs[j])}, {c0}")
                e(f"v_dot2_f32_bf16 {v(ACC+2*k+1)}, {v(W+4*j+k)}, {v(XN+j)}, {c1}")
        nop(4)
    gemv8l(WR, SC, XLl, ACC)
    reduce64(ACC, 4, 5, 6, WR)
    e(f"v_and_b32 {v(T0)}, 15, v1")
    e(f"v_lshlrev_b32 {v(T0)}, 5, {v(T0)}")
    for rnd in range(2):
        for pp in range(4):
            e(f"ds_read_b128 {vr(WR+8*pp,4)}, {v(T0)} offset:{LDS_RED2+(rnd*4+pp)*512}")
            e(f"ds_read_b128 {vr(WR+8*pp+4,4)}, {v(T0)} offset:{LDS_RED2+(rnd*4+pp)*512+16}")
        e("s_waitcnt lgkmcnt(0)")
        for k in range(8):
            e(f"v_add_f32 {v(WR+k)}, {v(WR+k)}, {v(WR+8+k)}")
            e(f"v_add_f32 {v(WR+16+k)}, {v(WR+16+k)}, {v(WR+24+k)}")
        for k in range(8):
            if rnd == 0:
                e(f"v_add_f32 {v(ACC+k)}, {v(WR+k)}, {v(WR+16+k)}")
            else:
                e(f"v_add_f32 {v(WR+k)}, {v(WR+k)}, {v(WR+16+k)}")
                e(f"v_add_f32 {v(ACC+k)}, {v(ACC+k)}, {v(WR+k)}")
    for k in range(4):
        e(f"v_cvt_pk_bf16_f32 {v(Q+k)}, {v(ACC+2*k)}, {v(ACC+2*k+1)}")
    e("s_cmp_ge_u32 s2, 43")
    e("s_cbranch_scc1 KA_NOFFN")
    e("s_mov_b32 s56, s12"); e("s_mov_b32 s57, s13"); e("s_mov_b32 s58, 0x158000"); e("s_mov_b32 s59, 0x20000")
    e("s_mov_b32 s60, s14"); e("s_mov_b32 s61, s15"); e("s_mov_b32 s62, 0x158000"); e("s_mov_b32 s63, 0x20000")
    e(f"v_lshrrev_b32 {v(T0)}, 4, v0")
    e("s_mov_b32 s46, 22016")
    e(f"v_mul_lo_u32 {v(T0)}, {v(T0)}, s46")
    e(f"v_and_b32 {v(T0+1)}, 3, v0")
    e(f"v_lshl_add_u32 {v(T0)}, {v(T0+1)}, 4, {v(T0)}")
    e("s_mov_b32 s64, 0x0f0f0f0f"); e("s_mov_b32 s65, 0x0f0f0f0f")
    e("s_mov_b32 s66, 0xf0f0f0f0"); e("s_mov_b32 s67, 0xf0f0f0f0")
    for mat in range(2):
        e("s_lshl_b32 s45, s2, 6")
        e(f"s_mov_b64 exec, s[{64+2*mat}:{65+2*mat}]")
        for j in range(8):
            e(f"buffer_load_dwordx4 {vr(WR+4*j,4)}, {v(T0)}, s[{56+4*mat}:{59+4*mat}], s45 offen")
            if j < 7: e("s_add_u32 s45, s45, 2752")
    e("s_mov_b64 exec, -1")
    e(f"v_lshrrev_b32 {v(T0)}, 4, v0")
    e(f"v_lshlrev_b32 {v(T0)}, 5, {v(T0)}")
    e(f"v_lshrrev_b32 {v(T0+1)}, 3, v7")
    e(f"v_lshl_add_u32 {v(T0)}, {v(T0+1)}, 11, {v(T0)}")
    e(f"ds_read_b128 {vr(SC,4)}, {v(T0)} offset:{LDS_XN}")
    e(f"ds_read_b128 {vr(SC+4,4)}, {v(T0)} offset:{LDS_XN+16}")
    e("s_waitcnt vmcnt(0) lgkmcnt(0)")
    XL2 = [116,117,126,127]
    for half in range(2):
        for jj in range(4):
            j = half*4+jj
            e(f"v_lshrrev_b32 {v(XL2[jj])}, 16, {v(SC+j)}")
        for jj in range(4):
            j = half*4+jj
            for k in range(4):
                c0 = "0" if j == 0 else v(ACC+2*k)
                c1 = "0" if j == 0 else v(ACC+2*k+1)
                e(f"v_dot2_f32_bf16 {v(ACC+2*k)}, {v(WR+4*j+k)}, {v(XL2[jj])}, {c0}")
                e(f"v_dot2_f32_bf16 {v(ACC+2*k+1)}, {v(WR+4*j+k)}, {v(SC+j)}, {c1}")
        nop(4)
    reduce64(ACC, 4, 5, 6, WR)
    e(f"v_lshrrev_b32 {v(T0)}, 5, v0")
    e(f"v_and_b32 {v(T0+1)}, 31, v0")
    e(f"v_lshl_add_u32 {v(T0)}, {v(T0)}, 6, {v(T0+1)}")
    e(f"v_lshlrev_b32 {v(T0)}, 2, {v(T0)}")
    e("s_cmp_lg_u32 s43, 0")
    e("s_cbranch_scc1 KA_FFN_DONE")
    for pp in range(8):
        e(f"ds_read_b32 {v(WR+pp)}, {v(T0)} offset:{LDS_RED2+pp*512}")
        e(f"ds_read_b32 {v(WR+8+pp)}, {v(T0)} offset:{LDS_RED2+pp*512+128}")
    e("s_waitcnt lgkmcnt(0)")
    for base in (WR, WR+8):
        e(f"v_add_f32 {v(base)}, {v(base)}, {v(base+1)}")
        e(f"v_add_f32 {v(base+2)}, {v(base+2)}, {v(base+3)}")
        e(f"v_add_f32 {v(base+4)}, {v(base+4)}, {v(base+5)}")
        e(f"v_add_f32 {v(base+6)}, {v(base+6)}, {v(base+7)}")
        e(f"v_add_f32 {v(base)}, {v(base)}, {v(base+2)}")
        e(f"v_add_f32 {v(base+4)}, {v(base+4)}, {v(base+6)}")
        e(f"v_add_f32 {v(base)}, {v(base)}, {v(base+4)}")
    a, u, t, t2 = WR, WR+8, WR+1, WR+2
    bf16r(a, a, t)
    bf16r(u, u, t)
    e(f"v_mul_f32 {v(t)}, {v(a)}, {v(a)}")
    e(f"v_mul_f32 {v(t)}, {v(t)}, {v(a)}")
    e(f"v_mov_b32 {v(t2)}, 0x3d372713")
    e(f"v_fma_f32 {v(t)}, {v(t)}, {v(t2)}, {v(a)}")
    e(f"v_mul_f32 {v(t)}, 0x3f4c422a, {v(t)}")
    e(f"v_mul_f32 {v(t)}, 0x4038aa3b, {v(t)}")
    e(f"v_exp_f32 {v(t)}, {v(t)}")
    nop(1)
    e(f"v_add_f32 {v(t)}, 1.0, {v(t)}")
    e(f"v_rcp_f32 {v(t)}, {v(t)}")
    nop(1)
    e(f"v_fma_f32 {v(t)}, {v(t)}, -2.0, 1.0")
    e(f"v_add_f32 {v(t)}, 1.0, {v(t)}")
    e(f"v_mul_f32 {v(t)}, {v(t)}, {v(a)}")
    e(f"v_mul_f32 {v(t)}, 0.5, {v(t)}")
    bf16r(t, t, t2)
    e(f"v_mul_f32 {v(t)}, {v(t)}, {v(u)}")
    bf16r(t, t, t2)
    e(f"v_lshrrev_b32 {v(t2)}, 5, v0")
    e("s_mov_b32 s46, 1376")
    e(f"v_mul_lo_u32 {v(t2)}, {v(t2)}, s46")
    e(f"v_and_b32 {v(WR+3)}, 31, v0")
    e(f"v_add_u32 {v(t2)}, {v(t2)}, {v(WR+3)}")
    e(f"v_lshlrev_b32 {v(t2)}, 2, {v(t2)}")
    e("s_lshl_b32 s45, s2, 7")
    e(f"s_add_u32 s45, s45, {WS_H}")
    e(f"buffer_store_dword {v(t)}, {v(t2)}, s[36:39], s45 offen")
    lab("KA_FFN_DONE")
    lab("KA_NOFFN")
    e(f"v_mov_b32 {v(M)}, 0xff800000")
    e(f"v_mov_b32 {v(L)}, 0")
    for k in range(8): e(f"v_mov_b32 {v(ACC+k)}, 0")
    e(f"s_mov_b32 s46, {L2E}")
    e("s_mov_b32 s45, 0")
    PL, PH = WR, WR+8
    TA = WR+16
    def body(last):
        e("s_waitcnt vmcnt(8)" )
        for k in range(4):
            for j in range(8):
                c = "0" if k == 0 else v(SC+j)
                e(f"v_dot2_f32_bf16 {v(SC+j)}, {v(KR+4*j+k)}, {v(Q+k)}, {c}")
        if not last:
            e("s_add_u32 s44, s44, 0x20000")
            kvload(KR, "s[20:23]")
        else:
            nop(4)
        dpp_reduce([SC+j for j in range(8)])
        for j in range(0, 8, 2):
            e(f"v_cvt_pk_bf16_f32 {v(TA+j)}, {v(SC+j)}, {v(SC+j+1)}")
        for j in range(0, 8, 2):
            e(f"v_lshlrev_b32 {v(SC+j)}, 16, {v(TA+j)}")
            e(f"v_and_b32 {v(SC+j+1)}, 0xffff0000, {v(TA+j)}")
        for j in range(8):
            e(f"v_mul_f32 {v(SC+j)}, {SCALE}, {v(SC+j)}")
        for j in range(0, 8, 2):
            e(f"v_cvt_pk_bf16_f32 {v(TA+j)}, {v(SC+j)}, {v(SC+j+1)}")
        for j in range(0, 8, 2):
            e(f"v_lshlrev_b32 {v(SC+j)}, 16, {v(TA+j)}")
            e(f"v_and_b32 {v(SC+j+1)}, 0xffff0000, {v(TA+j)}")
        mn, ml, al = TA+8, TA+9, TA+10
        e(f"v_max3_f32 {v(mn)}, {v(M)}, {v(SC)}, {v(SC+1)}")
        e(f"v_max3_f32 {v(ml)}, {v(SC+2)}, {v(SC+3)}, {v(SC+4)}")
        e(f"v_max3_f32 {v(mn)}, {v(mn)}, {v(SC+5)}, {v(SC+6)}")
        e(f"v_max3_f32 {v(mn)}, {v(mn)}, {v(ml)}, {v(SC+7)}")
        e(f"v_mul_f32 {v(ml)}, s46, {v(mn)}")
        e(f"v_fma_f32 {v(al)}, {v(M)}, s46, -{v(ml)}")
        for j in range(8):
            e(f"v_fma_f32 {v(SC+j)}, {v(SC+j)}, s46, -{v(ml)}")
        e(f"v_exp_f32 {v(al)}, {v(al)}")
        for j in range(8):
            e(f"v_exp_f32 {v(SC+j)}, {v(SC+j)}")
        e(f"v_mov_b32 {v(M)}, {v(mn)}")
        for k in range(8):
            e(f"v_mul_f32 {v(ACC+k)}, {v(ACC+k)}, {v(al)}")
        for j in range(8):
            e(f"v_cvt_pk_bf16_f32 {v(PL+j)}, {v(SC+j)}, 0")
            e(f"v_cvt_pk_bf16_f32 {v(PH+j)}, 0, {v(SC+j)}")
        e(f"v_add_f32 {v(TA)}, {v(SC)}, {v(SC+1)}")
        e(f"v_add_f32 {v(TA+1)}, {v(SC+2)}, {v(SC+3)}")
        e(f"v_add_f32 {v(TA+2)}, {v(SC+4)}, {v(SC+5)}")
        e(f"v_add_f32 {v(TA+3)}, {v(SC+6)}, {v(SC+7)}")
        e(f"v_add_f32 {v(TA)}, {v(TA)}, {v(TA+1)}")
        e(f"v_add_f32 {v(TA+2)}, {v(TA+2)}, {v(TA+3)}")
        e(f"v_add_f32 {v(TA)}, {v(TA)}, {v(TA+2)}")
        e(f"v_fma_f32 {v(L)}, {v(L)}, {v(al)}, {v(TA)}")
        e("s_waitcnt vmcnt(0)" if last else "s_waitcnt vmcnt(8)")
        for j in range(8):
            for k in range(4):
                e(f"v_dot2_f32_bf16 {v(ACC+2*k)}, {v(VR+4*j+k)}, {v(PL+j)}, {v(ACC+2*k)}")
                e(f"v_dot2_f32_bf16 {v(ACC+2*k+1)}, {v(VR+4*j+k)}, {v(PH+j)}, {v(ACC+2*k+1)}")
        if not last:
            kvload(VR, "s[24:27]")
    lab("KA_LOOP")
    body(False)
    e("s_add_u32 s45, s45, 1")
    e("s_cmp_lt_u32 s45, 7")
    e("s_cbranch_scc1 KA_LOOP")
    body(True)
    nop(4)
    e(f"v_lshrrev_b32 {v(T0)}, 4, v0")
    e(f"v_lshlrev_b32 {v(T0)}, 2, {v(T0)}")
    e(f"ds_write_b32 {v(T0)}, {v(M)} offset:{LDS_M}")
    e("s_waitcnt lgkmcnt(0)")
    e("s_barrier")
    e(f"v_lshlrev_b32 {v(T0+1)}, 2, v1")
    e(f"ds_read_b32 {v(TA)}, {v(T0+1)} offset:{LDS_M}")
    e("s_waitcnt lgkmcnt(0)")
    dpp_reduce([TA], "v_max_f32")
    wave_total(TA, TA+1, "v_max_f32")
    e(f"v_sub_f32 {v(TA+1)}, {v(M)}, {v(TA)}")
    e(f"v_mul_f32 {v(TA+1)}, s46, {v(TA+1)}")
    e(f"v_exp_f32 {v(TA+1)}, {v(TA+1)}")
    nop(1)
    for k in range(8):
        e(f"v_mul_f32 {v(ACC+k)}, {v(ACC+k)}, {v(TA+1)}")
    e(f"v_mul_f32 {v(L)}, {v(L)}, {v(TA+1)}")
    e(f"ds_write_b32 {v(T0)}, {v(L)} offset:{LDS_L}")
    reduce64(ACC, 4, 5, 6, WR)
    e("s_cmp_ge_u32 s43, 3")
    e("s_cbranch_scc1 KA_END")
    e("s_cmp_eq_u32 s43, 2")
    e("s_cbranch_scc1 KA_LSUM")
    for pp in range(8):
        e(f"ds_read_b32 {v(WR+pp)}, v6 offset:{LDS_RED2+pp*512}")
    e("s_waitcnt lgkmcnt(0)")
    base = WR
    e(f"v_add_f32 {v(base)}, {v(base)}, {v(base+1)}")
    e(f"v_add_f32 {v(base+2)}, {v(base+2)}, {v(base+3)}")
    e(f"v_add_f32 {v(base+4)}, {v(base+4)}, {v(base+5)}")
    e(f"v_add_f32 {v(base+6)}, {v(base+6)}, {v(base+7)}")
    e(f"v_add_f32 {v(base)}, {v(base)}, {v(base+2)}")
    e(f"v_add_f32 {v(base+4)}, {v(base+4)}, {v(base+6)}")
    e(f"v_add_f32 {v(base)}, {v(base)}, {v(base+4)}")
    e("s_lshl_b32 s45, s50, 9")
    e(f"buffer_store_dword {v(base)}, v6, s[36:39], s45 offen offset:{WS_ACC}")
    e("s_branch KA_END")
    lab("KA_LSUM")
    e(f"ds_read_b32 {v(TA+1)}, {v(T0+1)} offset:{LDS_L}")
    e("s_waitcnt lgkmcnt(0)")
    dpp_reduce([TA+1])
    wave_total(TA+1, TA+2)
    e("s_lshl_b32 s45, s50, 3")
    e(f"s_add_u32 s45, s45, {WS_ML}")
    e(f"v_mov_b32 {v(TA+2)}, 0")
    e("s_mov_b64 exec, 1")
    e(f"buffer_store_dwordx2 {vr(TA,2)}, {v(TA+2)}, s[36:39], s45 offen")
    lab("KA_END")
    e("s_endpgm")

LDSB_O = 0
LDSB_RED = 32768
LDS_B_SIZE = 40960
def kernel_b():
    KB = "decode_epilogue_kernel"
    out.append(f".globl {KB}")
    out.append(".p2align 8")
    out.append(f".type {KB},@function")
    lab(KB)
    PA = 8
    ML = 40
    WO = 48
    WD = 80
    HH = 92
    AS = 98
    AY = WO
    HX = ML
    T = 114
    e("s_cmp_ge_u32 s2, 32")
    e("s_cbranch_scc1 KB_END")
    e("s_load_dwordx2 s[4:5], s[0:1], 0")
    e("s_load_dwordx2 s[6:7], s[0:1], 32")
    e("s_load_dwordx4 s[8:11], s[0:1], 64")
    e("s_load_dwordx2 s[12:13], s[0:1], 88")
    e("v_and_b32 v1, 63, v0")
    e("v_lshrrev_b32 v4, 6, v0")
    nop(1)
    e("v_readfirstlane_b32 s43, v4")
    e("s_and_b32 s46, s2, 7")
    e("s_lshr_b32 s47, s2, 3")
    e("s_lshl_b32 s40, s46, 2")
    e("s_add_u32 s40, s40, s47")
    e("v_lshrrev_b32 v4, 4, v0")
    e("v_and_b32 v7, 15, v0")
    e("v_lshlrev_b32 v2, 11, v4")
    e("v_lshl_add_u32 v2, v7, 5, v2")
    e("v_lshlrev_b32 v3, 5, v4")
    e("v_lshrrev_b32 v5, 5, v0")
    e("v_lshl_add_u32 v5, v5, 4, v7")
    e("v_bfe_u32 v6, v0, 4, 1")
    e(f"v_lshlrev_b32 {v(T)}, 10, v5")
    e(f"v_lshl_add_u32 {v(T)}, v6, 4, {v(T)}")
    e(f"v_lshlrev_b32 {v(T+1)}, 2, v5")
    e("s_waitcnt lgkmcnt(0)")
    e("s_mov_b32 s20, s12"); e("s_mov_b32 s21, s13"); e("s_mov_b32 s22, 0x40000"); e("s_mov_b32 s23, 0x20000")
    e("s_mov_b32 s24, s6"); e("s_mov_b32 s25, s7"); e("s_mov_b32 s26, 0x400000"); e("s_mov_b32 s27, 0x20000")
    e("s_mov_b32 s28, s8"); e("s_mov_b32 s29, s9"); e("s_mov_b32 s30, 0x158000"); e("s_mov_b32 s31, 0x20000")
    e(f"s_add_u32 s32, s12, {WS_H}"); e("s_addc_u32 s33, s13, 0"); e("s_mov_b32 s34, 5504"); e("s_mov_b32 s35, 0x20000")
    e(f"s_add_u32 s36, s12, {WS_H+5504}"); e("s_addc_u32 s37, s13, 0"); e("s_mov_b32 s38, 5504"); e("s_mov_b32 s39, 0x20000")
    for s in range(4):
        e(f"buffer_load_dwordx4 {vr(PA+8*s,4)}, v2, s[20:23], 0 offen offset:{WS_ACC+512*s}")
        e(f"buffer_load_dwordx4 {vr(PA+8*s+4,4)}, v2, s[20:23], 0 offen offset:{WS_ACC+512*s+16}")
    e(f"s_mov_b32 s45, {WS_ML}")
    e(f"buffer_load_dwordx4 {vr(ML,4)}, v3, s[20:23], s45 offen")
    e(f"buffer_load_dwordx4 {vr(ML+4,4)}, v3, s[20:23], s45 offen offset:16")
    e("s_lshl_b32 s45, s40, 5")
    for p in range(8):
        e(f"buffer_load_dwordx4 {vr(WO+4*p,4)}, {v(T)}, s[24:27], s45 offen")
        if p < 7: e("s_add_u32 s45, s45, 0x80000")
    e("s_lshl_b32 s45, s40, 5")
    e(f"v_add_u32 {v(T+2)}, 0x80000, {v(T)}")
    e(f"v_add_u32 {v(T+3)}, 0x100000, {v(T)}")
    for p in range(3):
        vo = [T, T+2, T+3][p]
        e(f"buffer_load_dwordx4 {vr(WD+4*p,4)}, {v(vo)}, s[28:31], s45 offen")
    e(f"v_add_u32 {v(T+11)}, 0x1000, {v(T+1)}")
    for b in range(2):
        for p in range(3):
            vo = T+1 if p < 2 else T+11
            e(f"buffer_load_dword {v(HH+3*b+p)}, {v(vo)}, s[{32+4*b}:{35+4*b}], 0 offen offset:{2048*(p%2)}")
    e(f"s_mov_b32 s46, {L2E}")
    e("s_waitcnt vmcnt(17)")
    m = [ML, ML+2, ML+4, ML+6]; l = [ML+1, ML+3, ML+5, ML+7]
    e(f"v_max3_f32 {v(T+4)}, {v(m[0])}, {v(m[1])}, {v(m[2])}")
    e(f"v_max_f32 {v(T+4)}, {v(T+4)}, {v(m[3])}")
    for s in range(4):
        e(f"v_sub_f32 {v(T+5+s)}, {v(m[s])}, {v(T+4)}")
    for s in range(4):
        e(f"v_mul_f32 {v(T+5+s)}, s46, {v(T+5+s)}")
    for s in range(4):
        e(f"v_exp_f32 {v(T+5+s)}, {v(T+5+s)}")
    nop(1)
    e(f"v_mul_f32 {v(T+9)}, {v(l[0])}, {v(T+5)}")
    for s in range(1, 4):
        e(f"v_fma_f32 {v(T+9)}, {v(l[s])}, {v(T+5+s)}, {v(T+9)}")
    e(f"v_rcp_f32 {v(T+9)}, {v(T+9)}")
    for k in range(8):
        e(f"v_mul_f32 {v(PA+k)}, {v(PA+k)}, {v(T+5)}")
        for s in range(1, 4):
            e(f"v_fma_f32 {v(PA+k)}, {v(PA+8*s+k)}, {v(T+5+s)}, {v(PA+k)}")
    for k in range(8):
        e(f"v_mul_f32 {v(PA+k)}, {v(PA+k)}, {v(T+9)}")
    for k in range(0, 8, 2):
        e(f"v_cvt_pk_bf16_f32 {v(T+10)}, {v(PA+k)}, {v(PA+k+1)}")
        e(f"v_lshlrev_b32 {v(PA+k)}, 16, {v(T+10)}")
        e(f"v_and_b32 {v(PA+k+1)}, 0xffff0000, {v(T+10)}")
    e(f"v_lshlrev_b32 {v(T+10)}, 5, v0")
    e(f"ds_write_b128 {v(T+10)}, {vr(PA,4)} offset:{LDSB_O}")
    e(f"ds_write_b128 {v(T+10)}, {vr(PA+4,4)} offset:{LDSB_O+16}")
    e("s_waitcnt lgkmcnt(0)")
    e("s_barrier")
    O0, O1 = PA, PA+8
    X0, X1 = PA+16, PA+24
    for p in range(8):
        e(f"ds_read_b32 {v(O0+p)}, {v(T+1)} offset:{LDSB_O+2048*p}")
        e(f"ds_read_b32 {v(O1+p)}, {v(T+1)} offset:{LDSB_O+16384+2048*p}")
    e("s_waitcnt vmcnt(9) lgkmcnt(0)")
    for p in range(8):
        e(f"v_lshrrev_b32 {v(X0+p)}, 16, {v(O0+p)}")
        e(f"v_lshrrev_b32 {v(X1+p)}, 16, {v(O1+p)}")
    for p in range(8):
        for k in range(4):
            z = p == 0
            e(f"v_dot2_f32_bf16 {v(AS+2*k)}, {v(WO+4*p+k)}, {v(X0+p)}, {'0' if z else v(AS+2*k)}")
            e(f"v_dot2_f32_bf16 {v(AS+2*k+1)}, {v(WO+4*p+k)}, {v(O0+p)}, {'0' if z else v(AS+2*k+1)}")
            e(f"v_dot2_f32_bf16 {v(AS+8+2*k)}, {v(WO+4*p+k)}, {v(X1+p)}, {'0' if z else v(AS+8+2*k)}")
            e(f"v_dot2_f32_bf16 {v(AS+8+2*k+1)}, {v(WO+4*p+k)}, {v(O1+p)}, {'0' if z else v(AS+8+2*k+1)}")
    e("s_waitcnt vmcnt(0)")
    for i in range(6):
        e(f"v_lshrrev_b32 {v(HX+i)}, 16, {v(HH+i)}")
    for p in range(3):
        for k in range(4):
            z = p == 0
            e(f"v_dot2_f32_bf16 {v(AY+2*k)}, {v(WD+4*p+k)}, {v(HX+p)}, {'0' if z else v(AY+2*k)}")
            e(f"v_dot2_f32_bf16 {v(AY+2*k+1)}, {v(WD+4*p+k)}, {v(HH+p)}, {'0' if z else v(AY+2*k+1)}")
            e(f"v_dot2_f32_bf16 {v(AY+8+2*k)}, {v(WD+4*p+k)}, {v(HX+3+p)}, {'0' if z else v(AY+8+2*k)}")
            e(f"v_dot2_f32_bf16 {v(AY+8+2*k+1)}, {v(WD+4*p+k)}, {v(HH+3+p)}, {'0' if z else v(AY+8+2*k+1)}")
    nop(4)
    dpp_reduce([AS+i for i in range(16)] + [AY+i for i in range(16)])
    e(f"v_lshrrev_b32 {v(T+10)}, 5, v0")
    e(f"v_lshl_add_u32 {v(T+10)}, {v(T+10)}, 1, v6")
    e(f"v_lshlrev_b32 {v(T+10)}, 7, {v(T+10)}")
    for i in range(8):
        e(f"ds_write_b64 {v(T+10)}, {vr(AS+2*i,2)} offset:{LDSB_RED+8*i}")
    for i in range(4):
        e(f"ds_write_b128 {v(T+10)}, {vr(AY+4*i,4)} offset:{LDSB_RED+64+16*i}")
    e("s_waitcnt lgkmcnt(0)")
    e("s_barrier")
    e("s_cmp_lg_u32 s43, 0")
    e("s_cbranch_scc1 KB_END")
    AC = PA
    e(f"v_and_b32 {v(T+10)}, 15, v0")
    e(f"v_lshrrev_b32 {v(T+11)}, 5, v0")
    e(f"v_lshl_add_u32 {v(T+10)}, {v(T+11)}, 4, {v(T+10)}")
    e(f"v_lshlrev_b32 {v(T+10)}, 2, {v(T+10)}")
    e(f"v_lshl_add_u32 {v(T+10)}, v6, 7, {v(T+10)}")
    for p in range(32):
        e(f"ds_read_b32 {v(AC+p)}, {v(T+10)} offset:{LDSB_RED+256*p}")
    e("s_mov_b32 s24, s4"); e("s_mov_b32 s25, s5"); e("s_mov_b32 s26, 2048"); e("s_mov_b32 s27, 0x20000")
    e("s_mov_b32 s28, s10"); e("s_mov_b32 s29, s11"); e("s_mov_b32 s30, 2048"); e("s_mov_b32 s31, 0x20000")
    e(f"v_bfe_u32 {v(T+11)}, v0, 3, 1")
    e(f"v_lshlrev_b32 {v(T+11)}, 10, {v(T+11)}")
    e(f"v_and_b32 {v(T+12)}, 7, v0")
    e(f"v_lshl_add_u32 {v(T+11)}, {v(T+12)}, 1, {v(T+11)}")
    e(f"v_lshl_add_u32 {v(T+11)}, v6, 4, {v(T+11)}")
    e("s_lshl_b32 s45, s40, 5")
    e(f"buffer_load_ushort {v(T+12)}, {v(T+11)}, s[24:27], s45 offen")
    e("s_waitcnt lgkmcnt(0)")
    n = 32
    while n > 1:
        for i in range(n//2):
            e(f"v_add_f32 {v(AC+i)}, {v(AC+i)}, {v(AC+i+n//2)}")
        n //= 2
    G, G2 = T+4, T+5
    bf16r(AC, AC, G)
    e(f"v_mul_f32 {v(G)}, 0xbfb8aa3b, {v(AC)}")
    e(f"v_exp_f32 {v(G)}, {v(G)}")
    nop(1)
    e(f"v_add_f32 {v(G)}, 1.0, {v(G)}")
    e(f"v_rcp_f32 {v(G)}, {v(G)}")
    nop(1)
    e(f"v_mul_f32 {v(G)}, {v(G)}, {v(AC)}")
    bf16r(G, G, G2)
    e(f"v_mov_b32 {v(G2)}, {v(G)}")
    nop(2)
    e(f"v_permlane32_swap_b32 {v(G2)}, {v(G)}")
    nop(2)
    e(f"v_mul_f32 {v(G)}, {v(G)}, {v(AC)}")
    bf16r(G, G, G2)
    e("s_waitcnt vmcnt(0)")
    e(f"v_lshlrev_b32 {v(T+12)}, 16, {v(T+12)}")
    e(f"v_add_f32 {v(G)}, {v(T+12)}, {v(G)}")
    e(f"v_cvt_pk_bf16_f32 {v(G)}, {v(G)}, {v(G)}")
    e("s_mov_b32 exec_lo, -1")
    e("s_mov_b32 exec_hi, 0")
    e(f"buffer_store_short {v(G)}, {v(T+11)}, s[28:31], s45 offen")
    lab("KB_END")
    e("s_endpgm")
    return KB

hdr = open("recurrent_scan__mha_block_cached__geglu_ffn__decode.s.ref").read().split("\n")
hdr = [l for l in hdr if l.startswith(";") and "@launch" not in l and "Override" not in l and "grid=ceil" not in l]
out.extend(hdr)
out.append(f"; @launch kernel={MAIN} grid=(256,1,1) block=(1024,1,1) lds={LDS_A_SIZE}")
out.append(f"; @launch kernel=decode_epilogue_kernel grid=(32,1,1) block=(1024,1,1) lds={LDS_B_SIZE}")
out.append('.amdgcn_target "amdgcn-amd-amdhsa--gfx950"')
out.append(".text")
kernel_a()
kb = kernel_b()
out.append('.section .rodata,"a"')
for name, nv in ((MAIN, 128), (kb, 128)):
    out.append(".p2align 6")
    out.append(f".amdhsa_kernel {name}")
    out.append(f"  .amdhsa_next_free_vgpr {nv}")
    out.append("  .amdhsa_next_free_sgpr 102")
    out.append(f"  .amdhsa_accum_offset {nv}")
    out.append("  .amdhsa_group_segment_fixed_size 0")
    out.append("  .amdhsa_kernarg_size 96")
    out.append("  .amdhsa_user_sgpr_count 2")
    out.append("  .amdhsa_user_sgpr_kernarg_segment_ptr 1")
    out.append("  .amdhsa_system_sgpr_workgroup_id_x 1")
    out.append(".end_amdhsa_kernel")
open("recurrent_scan__mha_block_cached__geglu_ffn__decode.s", "w").write("\n".join(out) + "\n")
```

```python
import sys
NT = " nt" if (len(sys.argv) > 1 and "nt" in sys.argv[1:]) else ""
for a in sys.argv[1:]:
    if a.startswith("pol="): NT = " " + a[4:].replace("+", " ")
out = []
ORDER = "xqoKV"
NL = 8
for a in sys.argv[1:]:
    if a.startswith("nl="): NL = int(a[3:])
NIT = 64 // NL
for a in sys.argv[1:]:
    if a.startswith("order="): ORDER = a[6:]
WOPOL = " nt" if "wont" in sys.argv else ""
def e(s):
    import re as _re
    if s.startswith("buffer_") or s.startswith("global_"):
        m = _re.search(r"offset:(\d+)", s)
        assert not m or int(m.group(1)) <= 4095, s
    if s.startswith("ds_"):
        m = _re.search(r"offset:(\d+)", s)
        assert not m or int(m.group(1)) <= 65535, s
    out.append("    " + s)
def lab(s): out.append(s + ":")
def nop(n): e(f"s_nop {n-1}")

L2E = "0x3fb8aa3b"
SCALE = "0x3db504f3"
MAIN = "recurrent_scan__mha_block_cached__geglu_ffn__decode_kernel"

LDS_XN = 0
LDS_RED2 = 4096
LDS_M = 8192
LDS_L = 8448
LDS_H = 8704
LDS_TK = 8960
LDS_RED = 9216
LDS_A_SIZE = 163840
WS_ACC = 0
WS_ML = 0x20000
WS_H = 0x21000
WS_U = 0x100000
WS_Y = 0x200000
WS_SIZE = 0x300000

def v(i): return f"v{i}"
def vr(i, n): return f"v[{i}:{i+n-1}]"

def bf16r(dst, src, tmp):
    e(f"v_cvt_pk_bf16_f32 {v(tmp)}, {v(src)}, {v(src)}")
    e(f"v_lshlrev_b32 {v(dst)}, 16, {v(tmp)}")

def dpp_reduce(regs, op="v_add_f32"):
    modes = ["quad_perm:[1,0,3,2]", "quad_perm:[2,3,0,1]", "row_half_mirror", "row_mirror"]
    for m in modes:
        if len(regs) < 3: nop(3)
        for r in regs:
            e(f"{op}_dpp {v(r)}, {v(r)}, {v(r)} {m} row_mask:0xf bank_mask:0xf")

def wave_total(reg, tmp, op="v_add_f32", s0=52):
    nop(2)
    for i in range(4):
        e(f"v_readlane_b32 s{s0+i}, {v(reg)}, {16*i}")
    nop(2)
    e(f"v_mov_b32 {v(tmp)}, s{s0}")
    e(f"{op} {v(tmp)}, s{s0+1}, {v(tmp)}")
    e(f"{op} {v(tmp)}, s{s0+2}, {v(tmp)}")
    e(f"{op} {v(reg)}, s{s0+3}, {v(tmp)}")

def layernorm(X, F, T, lds_addr_v, lds_off):
    for k in range(4):
        e(f"v_lshlrev_b32 {v(F+2*k)}, 16, {v(X+k)}")
        e(f"v_and_b32 {v(F+2*k+1)}, 0xffff0000, {v(X+k)}")
    s, t1, t2, mean, var = T, T+1, T+2, T+3, T+4
    e(f"v_add_f32 {v(s)}, {v(F)}, {v(F+1)}")
    e(f"v_add_f32 {v(t1)}, {v(F+2)}, {v(F+3)}")
    e(f"v_add_f32 {v(t2)}, {v(F+4)}, {v(F+5)}")
    e(f"v_add_f32 {v(mean)}, {v(F+6)}, {v(F+7)}")
    e(f"v_add_f32 {v(s)}, {v(s)}, {v(t1)}")
    e(f"v_add_f32 {v(t2)}, {v(t2)}, {v(mean)}")
    e(f"v_add_f32 {v(s)}, {v(s)}, {v(t2)}")
    dpp_reduce([s])
    wave_total(s, t1)
    e(f"v_mul_f32 {v(mean)}, 0x3b000000, {v(s)}")
    e(f"v_sub_f32 {v(t1)}, {v(F)}, {v(mean)}")
    e(f"v_mul_f32 {v(s)}, {v(t1)}, {v(t1)}")
    for k in range(1, 8):
        e(f"v_sub_f32 {v(t1)}, {v(F+k)}, {v(mean)}")
        e(f"v_fma_f32 {v(s)}, {v(t1)}, {v(t1)}, {v(s)}")
    dpp_reduce([s])
    wave_total(s, t1)
    e(f"v_mul_f32 {v(var)}, 0x3b000000, {v(s)}")
    bf16r(mean, mean, t1)
    bf16r(var, var, t1)
    e(f"v_add_f32 {v(var)}, 0x3727c5ac, {v(var)}")
    bf16r(var, var, t1)
    e(f"v_sqrt_f32 {v(var)}, {v(var)}")
    nop(1)
    bf16r(var, var, t1)
    e(f"v_rcp_f32 {v(var)}, {v(var)}")
    for k in range(8):
        e(f"v_sub_f32 {v(F+k)}, {v(F+k)}, {v(mean)}")
    for k in range(0, 8, 2):
        e(f"v_cvt_pk_bf16_f32 {v(t1)}, {v(F+k)}, {v(F+k+1)}")
        e(f"v_lshlrev_b32 {v(F+k)}, 16, {v(t1)}")
        e(f"v_and_b32 {v(F+k+1)}, 0xffff0000, {v(t1)}")
    for k in range(8):
        e(f"v_mul_f32 {v(F+k)}, {v(F+k)}, {v(var)}")
    for k in range(0, 8, 2):
        e(f"v_cvt_pk_bf16_f32 {v(t1)}, {v(F+k)}, {v(F+k+1)}")
        e(f"v_lshlrev_b32 {v(F+k)}, 16, {v(t1)}")
        e(f"v_and_b32 {v(F+k+1)}, 0xffff0000, {v(t1)}")
    e(f"ds_write_b128 {v(lds_addr_v)}, {vr(F,4)} offset:{lds_off}")
    e(f"ds_write_b128 {v(lds_addr_v)}, {vr(F+4,4)} offset:{lds_off+16}")

def gemv8(W, XN, XL, ACC):
    for j in range(8):
        e(f"v_lshrrev_b32 {v(XL+j)}, 16, {v(XN+j)}")
    for j in range(8):
        for k in range(4):
            c0 = "0" if j == 0 else v(ACC+2*k)
            c1 = "0" if j == 0 else v(ACC+2*k+1)
            e(f"v_dot2_f32_bf16 {v(ACC+2*k)}, {v(W+4*j+k)}, {v(XL+j)}, {c0}")
            e(f"v_dot2_f32_bf16 {v(ACC+2*k+1)}, {v(W+4*j+k)}, {v(XN+j)}, {c1}")
    nop(4)

def reduce64(ACC, vaddr_w, vaddr_r, vaddr_r2, T):
    e(f"ds_write_b128 {v(vaddr_w)}, {vr(ACC,4)} offset:{LDS_RED}")
    e(f"ds_write_b128 {v(vaddr_w)}, {vr(ACC+4,4)} offset:{LDS_RED+16}")
    e("s_waitcnt lgkmcnt(0)")
    e("s_barrier")
    for j in range(8):
        e(f"ds_read_b32 {v(T+j)}, {v(vaddr_r)} offset:{LDS_RED+512*j}")
    e("s_waitcnt lgkmcnt(0)")
    e(f"v_add_f32 {v(T)}, {v(T)}, {v(T+1)}")
    e(f"v_add_f32 {v(T+2)}, {v(T+2)}, {v(T+3)}")
    e(f"v_add_f32 {v(T+4)}, {v(T+4)}, {v(T+5)}")
    e(f"v_add_f32 {v(T+6)}, {v(T+6)}, {v(T+7)}")
    e(f"v_add_f32 {v(T)}, {v(T)}, {v(T+2)}")
    e(f"v_add_f32 {v(T+4)}, {v(T+4)}, {v(T+6)}")
    e(f"v_add_f32 {v(T)}, {v(T)}, {v(T+4)}")
    e(f"ds_write_b32 {v(vaddr_r2)}, {v(T)} offset:{LDS_RED2}")
    e("s_waitcnt lgkmcnt(0)")
    e("s_barrier")

def reduce32(ACC, SW, T):
    for k in range(8):
        e(f"v_mov_b32 {v(SW+k)}, {v(ACC+k)}")
    nop(2)
    for k in range(8):
        e(f"v_permlane32_swap_b32 {v(SW+k)}, {v(ACC+k)}")
    nop(2)
    for k in range(8):
        e(f"v_add_f32 {v(ACC+k)}, {v(ACC+k)}, {v(SW+k)}")
    e(f"v_bfe_u32 {v(T)}, v0, 4, 1")
    e("s_lshl_b32 s45, s43, 1")
    e(f"v_add_u32 {v(T)}, s45, {v(T)}")
    e(f"v_lshlrev_b32 {v(T)}, 9, {v(T)}")
    e(f"v_lshl_add_u32 {v(T)}, v7, 5, {v(T)}")
    e(f"ds_write_b128 {v(T)}, {vr(ACC,4)} offset:{LDS_RED}")
    e(f"ds_write_b128 {v(T)}, {vr(ACC+4,4)} offset:{LDS_RED+16}")
    e(f"v_lshrrev_b32 {v(T+1)}, 7, v0")
    e(f"v_lshlrev_b32 {v(T+1)}, 11, {v(T+1)}")
    e(f"v_and_b32 {v(T+2)}, 127, v0")
    e(f"v_lshl_add_u32 {v(T+1)}, {v(T+2)}, 2, {v(T+1)}")
    e("s_waitcnt lgkmcnt(0)")
    e("s_barrier")
    for j in range(4):
        e(f"ds_read_b32 {v(T+4+j)}, {v(T+1)} offset:{LDS_RED+512*j}")
    e("s_waitcnt lgkmcnt(0)")
    e(f"v_add_f32 {v(T+4)}, {v(T+4)}, {v(T+5)}")
    e(f"v_add_f32 {v(T+6)}, {v(T+6)}, {v(T+7)}")
    e(f"v_add_f32 {v(T+4)}, {v(T+4)}, {v(T+6)}")
    e(f"ds_write_b32 v6, {v(T+4)} offset:{LDS_RED2}")
    e("s_waitcnt lgkmcnt(0)")
    e("s_barrier")

LDS_WO = 32768
def kernel_a():
    KR, VR, WR = 8, 40, 72
    Q, ACC, M, L, SC = 104, 108, 116, 117, 118
    T0 = 126
    out.append(f".globl {MAIN}")
    out.append(".p2align 8")
    out.append(f".type {MAIN},@function")
    lab(MAIN)
    e("s_cmp_ge_u32 s2, 256")
    e("s_cbranch_scc1 KA_END")
    if "stamp" in sys.argv: e("s_memrealtime s[86:87]")
    e("s_load_dwordx8 s[4:11], s[0:1], 0")
    e("s_load_dwordx4 s[12:15], s[0:1], 48")
    e("s_load_dwordx2 s[16:17], s[0:1], 88")
    e("s_load_dwordx2 s[68:69], s[0:1], 32")
    e("s_load_dwordx2 s[70:71], s[0:1], 64")
    if "cpf" in sys.argv:
        e("s_getpc_b64 s[94:95]")
        lab("KA_PC")
        e("v_lshlrev_b32 v8, 4, v0")
        e("v_add_u32 v9, 0x4000, v8")
        e("v_min_u32 v8, KA_END-KA_PC-16, v8")
        e("v_min_u32 v9, KA_END-KA_PC-16, v9")
        e("global_load_dwordx4 v[12:15], v8, s[94:95]")
        e("global_load_dwordx4 v[16:19], v9, s[94:95]")
    e("v_and_b32 v1, 63, v0")
    e("v_lshrrev_b32 v4, 6, v0")
    nop(1)
    e("v_readfirstlane_b32 s43, v4")
    e("s_and_b32 s46, s2, 7")
    e("s_lshr_b32 s47, s2, 3")
    PF2 = "pf2" in sys.argv
    ILS = "ils" in sys.argv or "il2" in sys.argv
    IL2 = "il2" in sys.argv
    ROT = ([int(a[4:]) for a in sys.argv if a.startswith("rot=")] + [0])[0]
    XB = [int(a[3:]) for a in sys.argv if a.startswith("xb=")]
    XB = XB[0] if XB else None
    POOL = [int(a[5:]) for a in sys.argv if a.startswith("pool=")]
    POOL = POOL[0] if POOL else None
    QUAD = "quad" in sys.argv
    if QUAD:
        e("s_lshr_b32 s94, s46, 2")
        e("s_lshl_b32 s40, s94, 4")
        e("s_lshr_b32 s48, s47, 1")
        e("s_add_u32 s40, s40, s48")
        e("s_and_b32 s41, s47, 1")
        e("s_and_b32 s42, s46, 3")
    elif XB is None:
        e("s_lshr_b32 s48, s47, 3")
        e("s_lshl_b32 s40, s46, 2")
        e("s_add_u32 s40, s40, s48")
        e("s_lshr_b32 s41, s47, 2")
        e("s_and_b32 s41, s41, 1")
        e("s_and_b32 s42, s47, 3")
    else:
        e("s_lshr_b32 s48, s47, 2")
        if "x3" in sys.argv:
            e("s_lshr_b32 s95, s46, 1")
            e("s_xor_b32 s94, s95, s46")
            e("s_and_b32 s94, s94, 1")
            e("s_and_b32 s42, s46, 4")
            e("s_lshr_b32 s42, s42, 1")
            e("s_or_b32 s94, s94, s42")
            e("s_and_b32 s46, s95, 1")
        else:
            e("s_lshr_b32 s94, s46, 1")
        e("s_lshl_b32 s40, s94, 3")
        e("s_add_u32 s40, s40, s48")
        e("s_lshr_b32 s95, s47, 1")
        e("s_and_b32 s41, s95, 1")
        e("s_and_b32 s42, s46, 1")
        e("s_lshl_b32 s42, s42, 1")
        e("s_and_b32 s48, s47, 1")
        e("s_or_b32 s42, s42, s48")
    e("s_lshl_b32 s49, s41, 5")
    e("s_add_u32 s49, s49, s40")
    e("s_lshl_b32 s50, s49, 2")
    e("s_add_u32 s50, s50, s42")
    e("s_lshl_b32 s51, s50, 20")
    if POOL is not None:
        if QUAD:
            e("s_lshl_b32 s97, s47, 1")
            e("s_add_u32 s97, s97, s94")
            e("s_and_b32 s48, s47, 3")
        else:
            e("s_lshl_b32 s97, s95, 2")
            e("s_add_u32 s97, s97, s94")
            e("s_lshl_b32 s48, s41, 1")
        e("s_cmp_ge_u32 s97, 43")
        e("s_cselect_b32 s48, 4, s48")
        e("s_cmp_eq_u32 s42, s48")
        e("s_cselect_b32 s85, 1, 0")
        e(f"s_mul_i32 s94, s42, {POOL}")
        e("s_lshl_b32 s51, s49, 22")
        e("s_mov_b32 s99, 0x400000")
    elif XB is not None:
        e("s_lshl_b32 s97, s95, 2")
        e("s_add_u32 s97, s97, s94")
        e("s_lshl_b32 s48, s41, 1")
        e("s_cmp_ge_u32 s97, 43")
        e("s_cselect_b32 s48, 4, s48")
        e("s_cselect_b32 s94, 0, 6")
        e("s_cmp_lt_u32 s42, 2")
        e(f"s_cselect_b32 s98, {2*XB}, 0")
        e(f"s_add_u32 s98, s98, {256-XB}")
        e("s_add_u32 s98, s98, s94")
        e("s_cmp_eq_u32 s42, s48")
        e("s_cselect_b32 s85, 1, 0")
        e("s_cselect_b32 s95, 24, 0")
        e("s_sub_u32 s98, s98, s95")
        e("s_add_u32 s94, s94, 256")
        e("s_mul_i32 s99, s42, s94")
        e("s_sub_u32 s95, 4, s42")
        e("s_min_u32 s95, s95, s42")
        e(f"s_mul_i32 s95, s95, {XB}")
        e("s_add_u32 s99, s99, s95")
        e("s_cmp_gt_u32 s42, s48")
        e("s_cselect_b32 s95, 24, 0")
        e("s_sub_u32 s99, s99, s95")
        e("s_lshl_b32 s51, s49, 22")
        e("s_lshl_b32 s99, s99, 12")
        e("s_add_u32 s51, s51, s99")
        e("s_lshl_b32 s99, s98, 12")
    elif ILS:
        e("s_lshr_b32 s97, s47, 2")
        e("s_lshl_b32 s97, s97, 3")
        e("s_add_u32 s97, s97, s46")
        e("s_mov_b32 s98, 256")
        e("s_lshl_b32 s94, s42, 4")
        e("s_mov_b32 s85, 0")
        e("s_cmp_ge_u32 s97, 43")
        e("s_cbranch_scc1 KA_NOSKEW")
        e("s_mul_i32 s94, s42, 21")
        e("s_sub_u32 s94, s94, 20")
        e("s_mov_b32 s98, 261")
        e("s_cmp_eq_u32 s42, 1")
        e("s_cselect_b32 s94, 0, s94")
        e("s_cselect_b32 s98, 262, s98")
        e("s_cmp_lg_u32 s42, 0")
        e("s_cbranch_scc1 KA_NOSKEW")
        e("s_mov_b32 s98, 240")
        e("s_mov_b32 s94, 0")
        e("s_mov_b32 s85, 1")
        lab("KA_NOSKEW")
        e("s_add_u32 s94, s94, 720")
        e("s_lshl_b32 s94, s94, 12")
        e("s_lshl_b32 s51, s49, 22")
        e("s_mov_b32 s99, 0x400000")
    elif "skew" in sys.argv:
        e("s_lshr_b32 s97, s47, 2")
        e("s_lshl_b32 s97, s97, 3")
        e("s_add_u32 s97, s97, s46")
        e("s_mov_b32 s98, 256")
        e("s_lshl_b32 s99, s42, 8")
        e("s_mov_b32 s85, 0")
        e("s_cmp_ge_u32 s97, 43")
        e("s_cbranch_scc1 KA_NOSKEW")
        e(f"s_mov_b32 s98, 262")
        e(f"s_mul_i32 s99, s42, 262")
        e(f"s_sub_u32 s99, s99, 24")
        e("s_cmp_lg_u32 s42, 0")
        e("s_cbranch_scc1 KA_NOSKEW")
        e(f"s_mov_b32 s98, 238")
        e("s_mov_b32 s99, 0")
        e("s_mov_b32 s85, 1")
        lab("KA_NOSKEW")
        if "il" in sys.argv or "ns" in sys.argv:
            e("s_mov_b32 s98, 256")
            e("s_lshl_b32 s99, s42, 8")
        if "il" in sys.argv:
            e("s_mov_b32 s99, 0")
        e("s_lshl_b32 s51, s49, 22")
        e("s_lshl_b32 s99, s99, 12")
        e("s_add_u32 s51, s51, s99")
        e("s_lshl_b32 s99, s98, 12")
        if "il" in sys.argv:
            e("s_mov_b32 s99, 0x400000")
    e("v_lshlrev_b32 v5, 4, v1")
    e("v_lshrrev_b32 v4, 4, v0")
    e("v_and_b32 v7, 15, v0")
    e("v_lshlrev_b32 v6, 16, v4")
    e("v_lshl_add_u32 v6, v7, 4, v6")
    e("s_lshl_b32 s44, s43, 13")
    e("v_add_u32 v2, s44, v5")
    e("v_add_u32 v3, 0x1000, v2")
    if NL < 8:
        e(f"s_lshl_b32 s44, s43, {10 + (NL.bit_length()-1)}")
        if "dyn" in sys.argv:
            if not PF2: e("v_mov_b32 v39, v5")
            if POOL is not None:
                e("s_lshl_b32 s96, s94, 12")
                e("s_add_u32 s96, s96, s44")
            elif IL2:
                e("s_lshl_b32 s95, s42, 12")
                e("s_lshl_b32 s96, s44, 2")
                e("s_add_u32 s96, s95, s96")
            elif "il" in sys.argv or ILS:
                e("s_lshl_b32 s95, s42, 16")
                e("s_add_u32 s96, s95, s44")
            elif ROT:
                e(f"s_mul_i32 s95, s2, {ROT}")
                e("s_and_b32 s95, s95, 127")
                e("s_lshl_b32 s96, s95, 12")
                e("s_add_u32 s96, s96, s44")
            else:
                e("s_mov_b32 s96, s44")
        else:
            e("v_add_u32 v39, s44, v5")
    if "contig" in sys.argv:
        e("s_lshl_b32 s44, s43, 16")
        e("s_lshl_b32 s84, s43, 13")
        e("s_sub_u32 s84, s44, s84")
    e("s_waitcnt lgkmcnt(0)")
    e("s_add_u32 s20, s6, s51"); e("s_addc_u32 s21, s7, 0"); e("s_mov_b32 s22, s99" if "skew" in sys.argv else "s_mov_b32 s22, 0x100000"); e("s_mov_b32 s23, 0x20000")
    e("s_add_u32 s24, s8, s51"); e("s_addc_u32 s25, s9, 0"); e("s_mov_b32 s26, s99" if "skew" in sys.argv else "s_mov_b32 s26, 0x100000"); e("s_mov_b32 s27, 0x20000")
    e("s_mov_b32 s28, s10"); e("s_mov_b32 s29, s11"); e("s_mov_b32 s30, 0x400000"); e("s_mov_b32 s31, 0x20000")
    e("s_mov_b32 s32, s4"); e("s_mov_b32 s33, s5"); e("s_mov_b32 s34, 2048"); e("s_mov_b32 s35, 0x20000")
    e("s_mov_b32 s36, s16"); e("s_mov_b32 s37, s17"); e(f"s_mov_b32 s38, {WS_SIZE}"); e("s_mov_b32 s39, 0x20000")
    e("s_lshl_b32 s74, s40, 17")
    e("s_add_u32 s76, s68, s74"); e("s_addc_u32 s77, s69, 0"); e("s_mov_b32 s78, 0x20000"); e("s_mov_b32 s79, 0x20000")
    def x_load():
        e(f"buffer_load_dwordx4 {vr(SC,4)}, v5, s[32:35], 0 offen")
        e(f"buffer_load_dwordx4 {vr(SC+4,4)}, v5, s[32:35], 0 offen offset:1024")
    def wq_load():
        e("s_lshl_b32 s45, s40, 8")
        for j in range(8):
            e(f"buffer_load_dwordx4 {vr(WR+4*j,4)}, v6, s[28:31], s45 offen")
            if j < 7: e("s_add_u32 s45, s45, 0x2000")
    e("s_mov_b32 s44, s96" if "dyn" in sys.argv else "s_mov_b32 s44, 0")
    def kvload(base, srd, js=None):
        for j in (range(NL) if js is None else js):
            vo = ("v2" if j < 4 else "v3") if NL == 8 else ("v5" if PF2 else "v39")
            e(f"buffer_load_dwordx4 {vr(base+4*j,4)}, {vo}, {srd}, s44 offen offset:{(j%4)*1024}{NT}")
    XLl = [104,105,106,107,116,117,126,127]
    def wo_dma():
        e("s_lshl_b32 s45, s43, 13")
        e(f"s_add_u32 s45, s45, {LDS_WO}")
        e("s_mov_b32 m0, s45")
        nop(1)
        for j in range(4):
            e(f"buffer_load_dwordx4 {'v1' if 'nowo' in sys.argv else 'v2'}, s[76:79], 0 offen offset:{j*1024} lds")
        e("s_add_u32 s45, s45, 0x1000")
        e("s_mov_b32 m0, s45")
        nop(1)
        for j in range(4):
            e(f"buffer_load_dwordx4 {'v1' if 'nowo' in sys.argv else 'v3'}, s[76:79], 0 offen offset:{j*1024} lds")

    XL8 = XLl if PF2 else [56+i for i in range(8)]
    def prologue_common():
        assert NL <= 4
        x_load(); wq_load()
        if "skew" in sys.argv:
            e("s_cmp_eq_u32 s85, 0")
        else:
            e("s_mov_b32 s97, s2")
            e("s_cmp_ge_u32 s2, 0" if "noffn" in sys.argv else "s_cmp_ge_u32 s2, 43")
            e("s_cselect_b32 s85, 0, 1")
        e("s_cbranch_scc1 KA_ISSUE_N")
        e("s_mov_b32 s56, s12"); e("s_mov_b32 s57, s13"); e("s_mov_b32 s58, 0x158000"); e("s_mov_b32 s59, 0x20000")
        e("s_mov_b32 s60, s14"); e("s_mov_b32 s61, s15"); e("s_mov_b32 s62, 0x158000"); e("s_mov_b32 s63, 0x20000")
        e(f"v_lshrrev_b32 {v(T0)}, 3, v1")
        e("s_lshl_b32 s45, s43, 5")
        e(f"v_add_u32 {v(T0)}, s45, {v(T0)}")
        e("s_mov_b32 s46, 2752")
        e(f"v_mul_lo_u32 {v(T0)}, {v(T0)}, s46")
        e(f"v_and_b32 {v(T0+1)}, 3, v0")
        e(f"v_lshl_add_u32 {v(T0)}, {v(T0+1)}, 4, {v(T0)}")
        e("s_mov_b32 s64, 0x0f0f0f0f"); e("s_mov_b32 s65, 0x0f0f0f0f")
        e("s_mov_b32 s66, 0xf0f0f0f0"); e("s_mov_b32 s67, 0xf0f0f0f0")
        e("s_lshl_b32 s45, s97, 6")
        e("s_lshl_b32 s47, s43, 12")
        e(f"s_add_u32 s47, s47, {LDS_WO}")
        for i in range(4):
            e("s_mov_b32 m0, s47")
            for mat in range(2):
                e(f"s_mov_b64 exec, s[{64+2*mat}:{65+2*mat}]")
                e(f"buffer_load_dwordx4 {v(T0)}, s[{56+4*mat}:{59+4*mat}], s45 offen lds")
            if i < 3:
                e("s_add_u32 s45, s45, 22016"); e("s_add_u32 s47, s47, 1024")
        e("s_mov_b64 exec, -1")
        e("s_lshl_b32 s74, s97, 15")
        e("s_add_u32 s80, s70, s74"); e("s_addc_u32 s81, s71, 0"); e("s_mov_b32 s82, 0x8000"); e("s_mov_b32 s83, 0x20000")
        e("s_lshl_b32 s45, s43, 11")
        e(f"s_add_u32 s47, s45, {LDS_WO+65536}")
        e("s_mov_b32 m0, s47")
        nop(1)
        e(f"buffer_load_dwordx4 v5, s[80:83], s45 offen lds")
        e(f"buffer_load_dwordx4 v5, s[80:83], s45 offen offset:1024 lds")
        e("s_branch KA_ISSUE_KV")
        lab("KA_ISSUE_N")
        wo_dma()
        e(f"buffer_load_dword v70, v1, s[32:35], 0 offen")
        e(f"buffer_load_dword v71, v1, s[32:35], 0 offen")
        lab("KA_ISSUE_KV")
        kvload(KR, "s[20:23]")
        kvload(VR, "s[24:27]")
        after = 10 + 2*NL
        if PF2:
            e("s_add_u32 s44, s44, 0x10000")
            kvload(KR+16, "s[20:23]")
            kvload(VR+16, "s[24:27]")
            after = 10 + 4*NL
        e("v_lshlrev_b32 v4, 5, v1")
        e(f"s_waitcnt vmcnt({after+8})")
        if "stamp2" in sys.argv: e("s_memrealtime s[88:89]")
        e("s_mov_b32 s84, s85")
        e("s_cmp_lg_u32 s85, 0")
        e("s_cbranch_scc1 KA_LN")
        e("s_cmp_eq_u32 s41, 0")
        e("s_cbranch_scc1 KA_LN")
        lab("KA_LN_NEXT")
        for k in range(4): e(f"v_mov_b32 {v(SC+k)}, {v(SC+4+k)}")
        e("v_add_u32 v4, 0x800, v4")
        lab("KA_LN")
        layernorm(SC, 110, 104, 4, LDS_XN)
        e("s_cmp_lg_u32 s84, 0")
        e("s_mov_b32 s84, 0")
        e("s_cbranch_scc1 KA_LN_NEXT")
        e("v_lshrrev_b32 v4, 4, v0")
        e("v_lshlrev_b32 v4, 5, v4")
        e("s_lshl_b32 s46, s41, 11")
        e(f"v_add_u32 {v(T0)}, s46, v4")
        e("v_lshlrev_b32 v6, 2, v0")
        e("s_mov_b32 s84, 0")
        if "dyn" in sys.argv:
            e(f"v_mov_b32 v116, {32 if PF2 else 16}")
            e(f"v_mov_b32 v117, 0")
            e(f"ds_write_b32 v117, v116 offset:{LDS_TK}")
            if POOL is not None:
                e("v_min_u32 v67, 59, v0")
                e("v_lshlrev_b32 v67, 2, v67")
                e("v_mov_b32 v66, -1")
                e(f"ds_write_b32 v67, v66 offset:{LDS_TK+16}")
        e(f"s_waitcnt vmcnt({after}) lgkmcnt(0)")
        if "stamp2" in sys.argv: e("s_memrealtime s[90:91]")
        lab("KA_JOB")
        e(f"ds_read_b128 {vr(SC,4)}, {v(T0)} offset:{LDS_XN}")
        e(f"ds_read_b128 {vr(SC+4,4)}, {v(T0)} offset:{LDS_XN+16}")
        e("s_waitcnt lgkmcnt(0)")
        for j in range(8):
            e(f"v_lshrrev_b32 {v(XL8[j])}, 16, {v(SC+j)}")
        for j in range(8):
            for k in range(4):
                c0 = "0" if j == 0 else v(ACC+2*k)
                c1 = "0" if j == 0 else v(ACC+2*k+1)
                e(f"v_dot2_f32_bf16 {v(ACC+2*k)}, {v(WR+4*j+k)}, {v(XL8[j])}, {c0}")
                e(f"v_dot2_f32_bf16 {v(ACC+2*k+1)}, {v(WR+4*j+k)}, {v(SC+j)}, {c1}")
        e("s_cmp_eq_u32 s85, 0")
        e("s_cbranch_scc1 KA_JOB_NOW")
        e(f"s_waitcnt vmcnt({after-10})")
        lab("KA_JOB_NOW")
        nop(2)
        reduce32(ACC, WR+8, WR)
        e("s_cmp_lg_u32 s84, 0")
        e("s_cbranch_scc1 KA_FFN_TAIL")
        e(f"v_and_b32 {v(T0)}, 15, v1")
        e(f"v_lshlrev_b32 {v(T0)}, 5, {v(T0)}")
        for rnd in range(2):
            for pp in range(4):
                e(f"ds_read_b128 {vr(WR+8*pp,4)}, {v(T0)} offset:{LDS_RED2+(rnd*4+pp)*512}")
                e(f"ds_read_b128 {vr(WR+8*pp+4,4)}, {v(T0)} offset:{LDS_RED2+(rnd*4+pp)*512+16}")
            e("s_waitcnt lgkmcnt(0)")
            for k in range(8):
                e(f"v_add_f32 {v(WR+k)}, {v(WR+k)}, {v(WR+8+k)}")
                e(f"v_add_f32 {v(WR+16+k)}, {v(WR+16+k)}, {v(WR+24+k)}")
            for k in range(8):
                if rnd == 0:
                    e(f"v_add_f32 {v(ACC+k)}, {v(WR+k)}, {v(WR+16+k)}")
                else:
                    e(f"v_add_f32 {v(WR+k)}, {v(WR+k)}, {v(WR+16+k)}")
                    e(f"v_add_f32 {v(ACC+k)}, {v(ACC+k)}, {v(WR+k)}")
        for k in range(4):
            e(f"v_cvt_pk_bf16_f32 {v(Q+k)}, {v(ACC+2*k)}, {v(ACC+2*k+1)}")
        e("s_cmp_eq_u32 s85, 0")
        e("s_cbranch_scc1 KA_PRO_DONE")
        e(f"v_lshrrev_b32 {v(T0)}, 4, v0")
        e(f"v_lshlrev_b32 {v(T0)}, 10, {v(T0)}")
        e(f"v_and_b32 {v(T0+1)}, 7, v0")
        e(f"v_lshl_add_u32 {v(T0)}, {v(T0+1)}, 4, {v(T0)}")
        for j in range(8):
            e(f"ds_read_b128 {vr(WR+4*j,4)}, {v(T0)} offset:{LDS_WO+128*j}")
        e(f"v_lshrrev_b32 {v(T0+1)}, 3, v7")
        e(f"v_lshl_add_u32 {v(T0)}, {v(T0+1)}, 11, v4")
        e("s_mov_b32 s84, 1")
        e("s_branch KA_JOB")
        lab("KA_FFN_TAIL")
        e(f"v_lshrrev_b32 {v(T0)}, 5, v0")
        e(f"v_and_b32 {v(T0+1)}, 31, v0")
        e(f"v_lshl_add_u32 {v(T0)}, {v(T0)}, 6, {v(T0+1)}")
        e(f"v_lshlrev_b32 {v(T0)}, 2, {v(T0)}")
        e("s_cmp_lg_u32 s43, 0")
        e("s_cbranch_scc1 KA_FFN_H_DONE")
        for pp in range(8):
            e(f"ds_read_b32 {v(WR+pp)}, {v(T0)} offset:{LDS_RED2+pp*512}")
            e(f"ds_read_b32 {v(WR+8+pp)}, {v(T0)} offset:{LDS_RED2+pp*512+128}")
        e("s_waitcnt lgkmcnt(0)")
        for base in (WR, WR+8):
            e(f"v_add_f32 {v(base)}, {v(base)}, {v(base+1)}")
            e(f"v_add_f32 {v(base+2)}, {v(base+2)}, {v(base+3)}")
            e(f"v_add_f32 {v(base+4)}, {v(base+4)}, {v(base+5)}")
            e(f"v_add_f32 {v(base+6)}, {v(base+6)}, {v(base+7)}")
            e(f"v_add_f32 {v(base)}, {v(base)}, {v(base+2)}")
            e(f"v_add_f32 {v(base+4)}, {v(base+4)}, {v(base+6)}")
            e(f"v_add_f32 {v(base)}, {v(base)}, {v(base+4)}")
        a, u, t, t2 = WR, WR+8, WR+1, WR+2
        bf16r(a, a, t)
        bf16r(u, u, t)
        e(f"v_mul_f32 {v(t)}, {v(a)}, {v(a)}")
        e(f"v_mul_f32 {v(t)}, {v(t)}, {v(a)}")
        e(f"v_mov_b32 {v(t2)}, 0x3d372713")
        e(f"v_fma_f32 {v(t)}, {v(t)}, {v(t2)}, {v(a)}")
        e(f"v_mul_f32 {v(t)}, 0x3f4c422a, {v(t)}")
        e(f"v_mul_f32 {v(t)}, 0x4038aa3b, {v(t)}")
        e(f"v_exp_f32 {v(t)}, {v(t)}")
        nop(1)
        e(f"v_add_f32 {v(t)}, 1.0, {v(t)}")
        e(f"v_rcp_f32 {v(t)}, {v(t)}")
        nop(1)
        e(f"v_fma_f32 {v(t)}, {v(t)}, -2.0, 1.0")
        e(f"v_add_f32 {v(t)}, 1.0, {v(t)}")
        e(f"v_mul_f32 {v(t)}, {v(t)}, {v(a)}")
        e(f"v_mul_f32 {v(t)}, 0.5, {v(t)}")
        bf16r(t, t, t2)
        e(f"v_mul_f32 {v(t)}, {v(t)}, {v(u)}")
        bf16r(t, t, t2)
        e(f"ds_write_b32 v6, {v(t)} offset:{LDS_H}")
        e("s_waitcnt lgkmcnt(0)")
        lab("KA_FFN_H_DONE")
        e("s_barrier")
        e("s_lshl_b32 s45, s43, 3")
        e(f"v_mov_b32 {v(T0)}, s45")
        e(f"ds_read_b64 {vr(WR+24,2)}, {v(T0)} offset:{LDS_H}")
        e(f"ds_read_b64 {vr(WR+26,2)}, {v(T0)} offset:{LDS_H+128}")
        e("s_lshl_b32 s45, s43, 11")
        e(f"s_add_u32 s45, s45, {LDS_WO+65536}")
        e(f"v_lshlrev_b32 {v(T0)}, 4, v1")
        e(f"v_add_u32 {v(T0)}, s45, {v(T0)}")
        e(f"ds_read_b128 {vr(WR+16,4)}, {v(T0)}")
        e(f"ds_read_b128 {vr(WR+20,4)}, {v(T0)} offset:1024")
        e("s_waitcnt lgkmcnt(0)")
        for i in range(4):
            e(f"v_lshrrev_b32 {v(WR+28+i)}, 16, {v(WR+24+i)}")
        YA = [ACC, SC]
        for f in range(2):
            for b in range(2):
                for k in range(4):
                    z = f == 0
                    e(f"v_dot2_f32_bf16 {v(YA[b]+2*k)}, {v(WR+16+4*f+k)}, {v(WR+28+2*b+f)}, {'0' if z else v(YA[b]+2*k)}")
                    e(f"v_dot2_f32_bf16 {v(YA[b]+2*k+1)}, {v(WR+16+4*f+k)}, {v(WR+24+2*b+f)}, {'0' if z else v(YA[b]+2*k+1)}")
        e("s_lshl_b32 s45, s43, 12")
        e(f"v_lshlrev_b32 {v(T0)}, 5, v1")
        e(f"v_add_u32 {v(T0)}, s45, {v(T0)}")
        nop(2)
        e(f"ds_write_b128 {v(T0)}, {vr(ACC,4)} offset:{LDS_WO}")
        e(f"ds_write_b128 {v(T0)}, {vr(ACC+4,4)} offset:{LDS_WO+16}")
        e(f"ds_write_b64 {v(T0)}, {vr(SC,2)} offset:{LDS_WO+2048}")
        e(f"ds_write_b64 {v(T0)}, {vr(SC+2,2)} offset:{LDS_WO+2048+8}")
        e(f"ds_write_b64 {v(T0)}, {vr(SC+4,2)} offset:{LDS_WO+2048+16}")
        e(f"ds_write_b64 {v(T0)}, {vr(SC+6,2)} offset:{LDS_WO+2048+24}")
        e("s_waitcnt lgkmcnt(0)")
        e("s_barrier")
        e(f"v_add_u32 {v(T0)}, 0x8000, v6")
        for w in range(16):
            e(f"ds_read_b32 {v(WR+w)}, {'v6' if w < 8 else v(T0)} offset:{LDS_WO+4096*(w%8)}")
        e("s_waitcnt lgkmcnt(0)")
        n = 16
        while n > 1:
            for i in range(n//2):
                e(f"v_add_f32 {v(WR+i)}, {v(WR+i)}, {v(WR+i+n//2)}")
            n //= 2
        e("s_lshl_b32 s45, s97, 12")
        e(f"s_add_u32 s45, s45, {WS_Y}")
        e(f"buffer_store_dword {v(WR)}, v6, s[36:39], s45 offen")
        e("s_barrier")
        wo_dma()
        e("s_waitcnt vmcnt(0)")
        lab("KA_PRO_DONE")

    def init_loop():
        if "stamp" in sys.argv: e("s_memrealtime s[92:93]" if "stamp2" in sys.argv else "s_memrealtime s[88:89]")
        e(f"v_mov_b32 {v(M)}, 0xff800000")
        e(f"v_mov_b32 {v(L)}, 0")
        for k in range(8): e(f"v_mov_b32 {v(ACC+k)}, 0")
        e(f"s_mov_b32 s46, {L2E}")
        e("s_mov_b32 s45, 0")
    PL, PH = WR, WR+8
    TA = WR+16
    def body(last, first=False):
        e(f"s_waitcnt vmcnt({first[0]})" if first else f"s_waitcnt vmcnt({NL})")
        for k in range(4):
            for j in range(NL):
                c = "0" if k == 0 else v(SC+j)
                e(f"v_dot2_f32_bf16 {v(SC+j)}, {v(KR+4*j+k)}, {v(Q+k)}, {c}")
        if not last:
            if "dyn" not in sys.argv: e(f"s_add_u32 s44, s44, {NL*1024*16}")
            if PF2:
                e("s_cbranch_scc1 KA_ALTK")
            kvload(KR, "s[20:23]")
            if PF2: lab("KA_ALTK_RET")
        if last or NL < 4:
            nop(4)
        dpp_reduce([SC+j for j in range(NL)])
        for j in range(0, NL, 2):
            e(f"v_cvt_pk_bf16_f32 {v(TA+j)}, {v(SC+j)}, {v(SC+j+1)}")
        for j in range(0, NL, 2):
            e(f"v_lshlrev_b32 {v(SC+j)}, 16, {v(TA+j)}")
            e(f"v_and_b32 {v(SC+j+1)}, 0xffff0000, {v(TA+j)}")
        for j in range(NL):
            e(f"v_mul_f32 {v(SC+j)}, {SCALE}, {v(SC+j)}")
        for j in range(0, NL, 2):
            e(f"v_cvt_pk_bf16_f32 {v(TA+j)}, {v(SC+j)}, {v(SC+j+1)}")
        for j in range(0, NL, 2):
            e(f"v_lshlrev_b32 {v(SC+j)}, 16, {v(TA+j)}")
            e(f"v_and_b32 {v(SC+j+1)}, 0xffff0000, {v(TA+j)}")
        mn, ml, al = TA+8, TA+9, TA+10
        e(f"v_max3_f32 {v(mn)}, {v(M)}, {v(SC)}, {v(SC+1)}")
        for j in range(2, NL, 2):
            e(f"v_max3_f32 {v(mn)}, {v(mn)}, {v(SC+j)}, {v(SC+j+1)}")
        e(f"v_mul_f32 {v(ml)}, s46, {v(mn)}")
        e(f"v_fma_f32 {v(al)}, {v(M)}, s46, -{v(ml)}")
        for j in range(NL):
            e(f"v_fma_f32 {v(SC+j)}, {v(SC+j)}, s46, -{v(ml)}")
        e(f"v_exp_f32 {v(al)}, {v(al)}")
        for j in range(NL):
            e(f"v_exp_f32 {v(SC+j)}, {v(SC+j)}")
        e(f"v_mov_b32 {v(M)}, {v(mn)}")
        for k in range(8):
            e(f"v_mul_f32 {v(ACC+k)}, {v(ACC+k)}, {v(al)}")
        for j in range(NL):
            e(f"v_cvt_pk_bf16_f32 {v(PL+j)}, {v(SC+j)}, 0")
            e(f"v_cvt_pk_bf16_f32 {v(PH+j)}, 0, {v(SC+j)}")
        e(f"v_add_f32 {v(TA)}, {v(SC)}, {v(SC+1)}")
        for j in range(2, NL, 2):
            e(f"v_add_f32 {v(TA+1)}, {v(SC+j)}, {v(SC+j+1)}")
            e(f"v_add_f32 {v(TA)}, {v(TA)}, {v(TA+1)}")
        e(f"v_fma_f32 {v(L)}, {v(L)}, {v(al)}, {v(TA)}")
        e("s_waitcnt vmcnt(0)" if last else (f"s_waitcnt vmcnt({first[1]})" if first else f"s_waitcnt vmcnt({NL})"))
        for j in range(NL):
            for k in range(4):
                e(f"v_dot2_f32_bf16 {v(ACC+2*k)}, {v(VR+4*j+k)}, {v(PL+j)}, {v(ACC+2*k)}")
                e(f"v_dot2_f32_bf16 {v(ACC+2*k+1)}, {v(VR+4*j+k)}, {v(PH+j)}, {v(ACC+2*k+1)}")
        if not last:
            if PF2:
                e("s_cbranch_scc1 KA_ALTV")
            kvload(VR, "s[24:27]")
        if NL < 4: nop(4)
    prologue_common()
    init_loop()
    if POOL is not None:
        S = POOL; NP = (1024 - 4*S)//8
        LA = [int(a[3:]) for a in sys.argv if a.startswith("la=")]
        LA = LA[0] if LA else 16
        assert NP + 3 + LA//8 <= 60 and (1024 - 4*S) % 8 == 0 and LA % 8 == 0 and S - LA >= 16
        LB = LDS_TK + 16
        e("s_load_dwordx2 s[60:61], s[0:1], 80")
        e("v_mov_b32 v66, 1")
        e("v_mov_b32 v67, 0")
        e("s_lshl_b32 s62, s49, 2")
        e("v_mov_b32 v103, s62")
        lab("KA_LOOP")
        e("s_mov_b64 exec, 1")
        e(f"ds_add_rtn_u32 v64, v67, v66 offset:{LDS_TK}")
        e("s_mov_b64 exec, -1")
        e("s_waitcnt lgkmcnt(0)")
        e("v_readfirstlane_b32 s45, v64")
        nop(1)
        e(f"s_cmp_ge_u32 s45, {S-LA}")
        e("s_cbranch_scc1 KA_POOL")
        lab("KA_ST")
        e("s_add_u32 s45, s45, s94")
        lab("KA_GO")
        e(f"s_lshl_b32 s44, s45, 12")
        body(False)
        e("s_branch KA_LOOP")
        lab("KA_POOL")
        e(f"s_sub_u32 s47, s45, {S-LA}")
        e("s_and_b32 s48, s47, 7")
        e("s_cmp_lg_u32 s48, 0")
        e("s_cbranch_scc1 KA_NOTRIG")
        e("s_mov_b64 exec, 1")
        e("global_atomic_add v65, v103, v66, s[60:61] sc0 sc1")
        e("s_lshr_b32 s48, s47, 3")
        e("s_lshl_b32 s48, s48, 2")
        e("v_mov_b32 v69, s48")
        e("s_waitcnt vmcnt(0)")
        e(f"v_min_u32 v68, {NP}, v65")
        e("v_lshlrev_b32 v68, 3, v68")
        e(f"v_add_u32 v68, {4*S}, v68")
        e(f"ds_write_b32 v69, v68 offset:{LB}")
        e("s_mov_b64 exec, -1")
        lab("KA_NOTRIG")
        e(f"s_cmp_lt_u32 s47, {LA}")
        e("s_cbranch_scc1 KA_ST")
        e(f"s_sub_u32 s47, s47, {LA}")
        e("s_lshr_b32 s48, s47, 3")
        e("s_lshl_b32 s48, s48, 2")
        e("v_mov_b32 v69, s48")
        lab("KA_SPIN")
        e(f"ds_read_b32 v68, v69 offset:{LB}")
        e("s_waitcnt lgkmcnt(0)")
        e("v_readfirstlane_b32 s45, v68")
        nop(1)
        e("s_cmp_lg_u32 s45, -1")
        e("s_cbranch_scc1 KA_GOT")
        e("s_sleep 2")
        e("s_branch KA_SPIN")
        lab("KA_GOT")
        e("s_cmp_ge_u32 s45, 1024")
        e("s_cbranch_scc1 KA_LAST")
        e("s_and_b32 s47, s47, 7")
        e("s_add_u32 s45, s45, s47")
        e("s_branch KA_GO")
        lab("KA_LAST")
        body(True)
    elif "dyn" in sys.argv:
        e("v_mov_b32 v101, 1")
        e("v_mov_b32 v102, 0")
        if PF2:
            e("s_waitcnt vmcnt(0)")
            e("s_cmp_eq_u32 s45, s45")
            e("s_branch KA_FIRST")
            lab("KA_ALTK")
            for k in range(16): e(f"v_mov_b32 {v(KR+k)}, {v(KR+16+k)}")
            e("s_branch KA_ALTK_RET")
            lab("KA_ALTV")
            nop(2)
            for k in range(16): e(f"v_mov_b32 {v(VR+k)}, {v(VR+16+k)}")
        lab("KA_LOOP")
        e("s_mov_b64 exec, 1")
        e(f"ds_add_rtn_u32 v100, v102, v101 offset:{LDS_TK}")
        e("s_mov_b64 exec, -1")
        e("s_waitcnt lgkmcnt(0)")
        e("v_readfirstlane_b32 s45, v100")
        nop(1)
        if ILS:
            if IL2:
                e("s_lshl_b32 s44, s45, 14")
                e("s_add_u32 s44, s44, s95")
            else:
                e("s_lshr_b32 s47, s45, 4")
                e("s_lshl_b32 s47, s47, 18")
                e("s_and_b32 s48, s45, 15")
                e("s_lshl_b32 s48, s48, 12")
                e("s_add_u32 s47, s47, s95")
                e("s_add_u32 s44, s47, s48")
            e("s_lshl_b32 s47, s45, 12")
            e("s_add_u32 s47, s47, s94")
            e("s_cmp_ge_u32 s45, 240")
            e("s_cselect_b32 s44, s47, s44")
        elif "il" in sys.argv:
            e("s_lshr_b32 s47, s45, 4")
            e("s_lshl_b32 s47, s47, 18")
            e("s_and_b32 s48, s45, 15")
            e("s_lshl_b32 s48, s48, 12")
            e("s_add_u32 s47, s47, s95")
            e("s_add_u32 s44, s47, s48")
        elif ROT:
            e("s_add_u32 s47, s45, s95")
            e("s_cmp_ge_u32 s47, s98")
            e("s_cselect_b32 s48, s98, 0")
            e("s_sub_u32 s47, s47, s48")
            e("s_lshl_b32 s44, s47, 12")
        else:
            e(f"s_lshl_b32 s44, s45, {10 + (NL.bit_length()-1)}")
        e("s_cmp_ge_u32 s45, s98" if "skew" in sys.argv else f"s_cmp_ge_u32 s45, {16*NIT}")
        e("s_cbranch_scc1 KA_LAST")
        if PF2: lab("KA_FIRST")
        body(False)
        e("s_branch KA_LOOP")
        lab("KA_LAST")
        body(True)
    else:
        lab("KA_LOOP")
        body(False)
        e("s_add_u32 s45, s45, 1")
        e(f"s_cmp_lt_u32 s45, {NIT-1}")
        e("s_cbranch_scc1 KA_LOOP")
        body(True)
    nop(4)
    if "stamp" in sys.argv and "stamp2" not in sys.argv: e("s_memrealtime s[90:91]")
    e(f"v_lshrrev_b32 {v(T0)}, 4, v0")
    e(f"v_lshlrev_b32 {v(T0)}, 2, {v(T0)}")
    e(f"ds_write_b32 {v(T0)}, {v(M)} offset:{LDS_M}")
    for j in range(8):
        e(f"ds_read_b128 {vr(KR+4*j,4)}, v2 offset:{LDS_WO+1024*j}")
    e("s_waitcnt lgkmcnt(0)")
    e("s_barrier")
    e(f"v_lshlrev_b32 {v(T0+1)}, 2, v1")
    e(f"ds_read_b32 {v(TA)}, {v(T0+1)} offset:{LDS_M}")
    e("s_waitcnt lgkmcnt(0)")
    dpp_reduce([TA], "v_max_f32")
    wave_total(TA, TA+1, "v_max_f32")
    e(f"v_sub_f32 {v(TA+1)}, {v(M)}, {v(TA)}")
    e(f"v_mul_f32 {v(TA+1)}, s46, {v(TA+1)}")
    e(f"v_exp_f32 {v(TA+1)}, {v(TA+1)}")
    nop(1)
    for k in range(8):
        e(f"v_mul_f32 {v(ACC+k)}, {v(ACC+k)}, {v(TA+1)}")
    e(f"v_mul_f32 {v(L)}, {v(L)}, {v(TA+1)}")
    e(f"ds_write_b32 {v(T0)}, {v(L)} offset:{LDS_L}")
    reduce32(ACC, SC, WR)
    e("s_lshl_b32 s45, s43, 5")
    e(f"v_mov_b32 {v(T0)}, s45")
    for pp in range(8):
        e(f"ds_read_b128 {vr(VR+8*(pp%4),4)}, {v(T0)} offset:{LDS_RED2+pp*512}")
        e(f"ds_read_b128 {vr(VR+8*(pp%4)+4,4)}, {v(T0)} offset:{LDS_RED2+pp*512+16}")
        if pp % 4 == 3:
            e("s_waitcnt lgkmcnt(0)")
            for k in range(8):
                e(f"v_add_f32 {v(VR+k)}, {v(VR+k)}, {v(VR+8+k)}")
                e(f"v_add_f32 {v(VR+16+k)}, {v(VR+16+k)}, {v(VR+24+k)}")
            for k in range(8):
                if pp == 3:
                    e(f"v_add_f32 {v(SC+k)}, {v(VR+k)}, {v(VR+16+k)}")
                else:
                    e(f"v_add_f32 {v(VR+k)}, {v(VR+k)}, {v(VR+16+k)}")
                    e(f"v_add_f32 {v(SC+k)}, {v(SC+k)}, {v(VR+k)}")
    for j in range(8):
        for k in range(4):
            e(f"v_lshlrev_b32 {v(VR+2*k)}, 16, {v(KR+4*j+k)}")
            e(f"v_and_b32 {v(VR+2*k+1)}, 0xffff0000, {v(KR+4*j+k)}")
        for k in range(8):
            if j == 0:
                e(f"v_mul_f32 {v(ACC+k)}, {v(SC+j)}, {v(VR+k)}")
            else:
                e(f"v_fma_f32 {v(ACC+k)}, {v(SC+j)}, {v(VR+k)}, {v(ACC+k)}")
    e("s_lshl_b32 s45, s43, 13")
    e(f"v_lshlrev_b32 {v(T0)}, 5, v1")
    e(f"v_add_u32 {v(T0)}, s45, {v(T0)}")
    e(f"ds_write_b128 {v(T0)}, {vr(ACC,4)} offset:{LDS_WO}")
    e(f"ds_write_b128 {v(T0)}, {vr(ACC+4,4)} offset:{LDS_WO+16}")
    e("s_waitcnt lgkmcnt(0)")
    e("s_barrier")
    e("s_cmp_ge_u32 s43, 9")
    e("s_cbranch_scc1 KA_END")
    e("s_cmp_eq_u32 s43, 8")
    e("s_cbranch_scc1 KA_LSUM")
    for q4 in range(4):
        e(f"v_add_u32 {v(VR+q4)}, {LDS_WO+32768*q4}, v6")
    for w in range(16):
        e(f"ds_read_b32 {v(WR+w)}, {v(VR+w//4)} offset:{8192*(w%4)}")
    e("s_waitcnt lgkmcnt(0)")
    n = 16
    while n > 1:
        for i in range(n//2):
            e(f"v_add_f32 {v(WR+i)}, {v(WR+i)}, {v(WR+i+n//2)}")
        n //= 2
    e("s_lshl_b32 s45, s50, 11")
    e(f"s_add_u32 s45, s45, {WS_U}")
    e(f"buffer_store_dword {v(WR)}, v6, s[36:39], s45 offen")
    e("s_branch KA_END")
    lab("KA_LSUM")
    e(f"ds_read_b32 {v(TA+1)}, {v(T0+1)} offset:{LDS_L}")
    e("s_waitcnt lgkmcnt(0)")
    dpp_reduce([TA+1])
    wave_total(TA+1, TA+2)
    e("s_lshl_b32 s45, s50, 3")
    e(f"s_add_u32 s45, s45, {WS_ML}")
    e(f"v_mov_b32 {v(TA+2)}, 0")
    e("s_mov_b64 exec, 1")
    e(f"buffer_store_dwordx2 {vr(TA,2)}, {v(TA+2)}, s[36:39], s45 offen")
    if "stamp" in sys.argv:
        if "stamp2" not in sys.argv: e("s_memrealtime s[92:93]")
        e("s_waitcnt lgkmcnt(0)")
        for i, r in enumerate((86, 88, 90, 92)):
            e(f"v_mov_b32 {v(WR+i)}, s{r}")
        e("s_lshl_b32 s45, s2, 4")
        e("s_add_u32 s45, s45, 0x280000")
        e(f"buffer_store_dwordx4 {vr(WR,4)}, {v(TA+2)}, s[36:39], s45 offen")
    lab("KA_END")
    e("s_endpgm")

LDS_F_SIZE = 2048
def kernel_f():
    KF = "decode_final_kernel"
    out.append(f".globl {KF}")
    out.append(".p2align 8")
    out.append(f".type {KF},@function")
    lab(KF)
    U, ML, Y, T = 8, 24, 56, 64
    e("s_cmp_ge_u32 s2, 32")
    e("s_cbranch_scc1 KF_END")
    e("s_load_dwordx2 s[4:5], s[0:1], 0")
    e("s_load_dwordx2 s[10:11], s[0:1], 72")
    e("s_load_dwordx2 s[12:13], s[0:1], 88")
    e("s_load_dwordx2 s[14:15], s[0:1], 80")
    e("s_lshr_b32 s41, s2, 4")
    e("s_and_b32 s40, s2, 15")
    e("v_and_b32 v1, 31, v0")
    e("v_lshrrev_b32 v2, 5, v0")
    e("v_lshlrev_b32 v3, 15, v2")
    e("v_lshl_add_u32 v3, v1, 2, v3")
    e("v_lshlrev_b32 v4, 7, v2")
    e("v_lshlrev_b32 v5, 12, v2")
    e("v_lshl_add_u32 v5, v1, 2, v5")
    e("s_lshl_b32 s44, s41, 18"); e("s_lshl_b32 s45, s40, 7"); e("s_add_u32 s44, s44, s45"); e(f"s_add_u32 s44, s44, {WS_U}")
    e("s_lshl_b32 s46, s41, 10"); e(f"s_add_u32 s46, s46, {WS_ML}")
    e("s_lshl_b32 s47, s41, 11"); e("s_add_u32 s47, s47, s45")
    e("s_waitcnt lgkmcnt(0)")
    e("s_mov_b32 s20, s12"); e("s_mov_b32 s21, s13"); e(f"s_mov_b32 s22, {WS_SIZE}"); e("s_mov_b32 s23, 0x20000")
    e(f"s_add_u32 s32, s12, {WS_Y}"); e("s_addc_u32 s33, s13, 0"); e(f"s_mov_b32 s34, {43*4096}"); e("s_mov_b32 s35, 0x20000")
    e("s_mov_b32 s24, s4"); e("s_mov_b32 s25, s5"); e("s_mov_b32 s26, 2048"); e("s_mov_b32 s27, 0x20000")
    e("s_mov_b32 s28, s10"); e("s_mov_b32 s29, s11"); e("s_mov_b32 s30, 2048"); e("s_mov_b32 s31, 0x20000")
    for hh in range(4):
        e(f"buffer_load_dwordx4 {vr(ML+8*hh,4)}, v4, s[20:23], s46 offen offset:{32*hh}")
        e(f"buffer_load_dwordx4 {vr(ML+8*hh+4,4)}, v4, s[20:23], s46 offen offset:{32*hh+16}")
    for i in range(16):
        e(f"buffer_load_dword {v(U+i)}, v3, s[20:23], s44 offen offset:{(i%2)*2048}")
        if i % 2 == 1 and i < 15: e("s_add_u32 s44, s44, 0x1000")
    for i in range(6):
        e(f"buffer_load_dword {v(Y+i)}, v5, s[32:35], s47 offen")
        if i < 5: e("v_add_u32 v5, 0x8000, v5")
    e("s_lshl_b32 s48, s41, 10"); e("s_lshl_b32 s49, s40, 6"); e("s_add_u32 s48, s48, s49")
    e("v_lshlrev_b32 v6, 1, v1")
    e(f"buffer_load_ushort {v(T+15)}, v6, s[24:27], s48 offen")
    e(f"s_mov_b32 s50, {L2E}")
    e("s_waitcnt vmcnt(23)")
    for hh in range(4):
        m = [ML+8*hh+2*i for i in range(4)]; l = [x+1 for x in m]
        e(f"v_max3_f32 {v(T)}, {v(m[0])}, {v(m[1])}, {v(m[2])}")
        e(f"v_max_f32 {v(T)}, {v(T)}, {v(m[3])}")
        for i in range(4): e(f"v_sub_f32 {v(m[i])}, {v(m[i])}, {v(T)}")
        for i in range(4): e(f"v_mul_f32 {v(m[i])}, s50, {v(m[i])}")
        for i in range(4): e(f"v_exp_f32 {v(m[i])}, {v(m[i])}")
        nop(1)
        e(f"v_mul_f32 {v(T)}, {v(l[0])}, {v(m[0])}")
        for i in range(1,4): e(f"v_fma_f32 {v(T)}, {v(l[i])}, {v(m[i])}, {v(T)}")
        e(f"v_rcp_f32 {v(T)}, {v(T)}")
        nop(1)
        for i in range(4): e(f"v_mul_f32 {v(m[i])}, {v(m[i])}, {v(T)}")
    e("s_waitcnt vmcnt(1)")
    e(f"v_mul_f32 {v(T)}, {v(U)}, {v(ML)}")
    for i in range(1, 16):
        e(f"v_fma_f32 {v(T)}, {v(U+i)}, {v(ML+8*(i//4)+2*(i%4))}, {v(T)}")
    e(f"v_add_f32 {v(Y)}, {v(Y)}, {v(Y+1)}")
    e(f"v_add_f32 {v(Y+2)}, {v(Y+2)}, {v(Y+3)}")
    e(f"v_add_f32 {v(Y+4)}, {v(Y+4)}, {v(Y+5)}")
    e(f"v_add_f32 {v(Y)}, {v(Y)}, {v(Y+2)}")
    e(f"v_add_f32 {v(T+1)}, {v(Y)}, {v(Y+4)}")
    e("v_lshlrev_b32 v7, 3, v0")
    e(f"ds_write_b64 v7, {vr(T,2)}")
    e("s_waitcnt lgkmcnt(0)")
    e("s_barrier")
    e("v_cmp_gt_u32 vcc, 32, v0")
    e("s_and_saveexec_b64 s[52:53], vcc")
    e("s_cbranch_execz KF_END")
    for g in range(8):
        e(f"ds_read_b64 {vr(U+2*g,2)}, v7 offset:{256*g}")
    e("s_waitcnt lgkmcnt(0)")
    n = 8
    while n > 1:
        for i in range(n//2):
            e(f"v_add_f32 {v(U+2*i)}, {v(U+2*i)}, {v(U+2*(i+n//2))}")
            e(f"v_add_f32 {v(U+2*i+1)}, {v(U+2*i+1)}, {v(U+2*(i+n//2)+1)}")
        n //= 2
    S, YY, G, G2 = U, U+1, T+2, T+3
    bf16r(S, S, G)
    bf16r(YY, YY, G)
    e(f"v_mul_f32 {v(G)}, 0xbfb8aa3b, {v(YY)}")
    e(f"v_exp_f32 {v(G)}, {v(G)}")
    nop(1)
    e(f"v_add_f32 {v(G)}, 1.0, {v(G)}")
    e(f"v_rcp_f32 {v(G)}, {v(G)}")
    nop(1)
    e(f"v_mul_f32 {v(G)}, {v(G)}, {v(YY)}")
    bf16r(G, G, G2)
    e(f"v_mul_f32 {v(G)}, {v(G)}, {v(S)}")
    bf16r(G, G, G2)
    e("s_waitcnt vmcnt(0)")
    e(f"v_lshlrev_b32 {v(T+15)}, 16, {v(T+15)}")
    e(f"v_add_f32 {v(G)}, {v(T+15)}, {v(G)}")
    e(f"v_cvt_pk_bf16_f32 {v(G)}, {v(G)}, {v(G)}")
    e(f"buffer_store_short {v(G)}, v6, s[28:31], s48 offen")
    if any(a.startswith("pool=") for a in sys.argv):
        lab("KF_Z")
        e("s_cmp_lg_u32 s2, 0")
        e("s_cbranch_scc1 KF_END")
        e("s_mov_b64 exec, -1")
        e("v_mbcnt_lo_u32_b32 v1, -1, 0")
        e("v_mbcnt_hi_u32_b32 v1, -1, v1")
        e("v_lshlrev_b32 v1, 2, v1")
        e("v_mov_b32 v2, 0")
        e("global_store_dword v1, v2, s[14:15]")
    lab("KF_END")
    e("s_endpgm")
    return KF

hdr = open("recurrent_scan__mha_block_cached__geglu_ffn__decode.s.ref").read().split("\n")
hdr = [l for l in hdr if l.startswith(";") and "@launch" not in l and "Override" not in l and "grid=ceil" not in l]
out.extend(hdr)
out.append(f"; @launch kernel={MAIN} grid=(256,1,1) block=(1024,1,1) lds={LDS_A_SIZE}")
out.append(f"; @launch kernel=decode_final_kernel grid=(32,1,1) block=(256,1,1) lds={LDS_F_SIZE}")
out.append('.amdgcn_target "amdgcn-amd-amdhsa--gfx950"')
out.append(".text")
kernel_a()
def dry_patch():
    DT = [int(a[4:]) for a in sys.argv if a.startswith("dry=")][0]
    st = lambda l: l.strip()
    iL = out.index("KA_LAST:"); iE = out.index("KA_END:")
    new = []; nb = 0
    body = out[iL:iE]
    for i, l in enumerate(body):
        t = st(l)
        if t == "s_barrier":
            nb += 1
            new.append(f"    s_cbranch_execz KA_DB{nb}")
            new.append(l)
            new.append(f"KA_DB{nb}:")
        elif t == "s_cmp_ge_u32 s43, 9":
            assert nb == 4
            new.append("    s_cbranch_execz KA_DT0")
            new.append(l)
        elif t == "s_cbranch_scc1 KA_LSUM":
            new.append(l)
            new.append("KA_DT0:")
        elif t == "s_branch KA_END":
            new.append("    s_cbranch_execz KA_LSUM")
            new.append(l)
        elif t == "s_mov_b64 exec, 1":
            new.append("    s_cbranch_execz KA_DRY_RET")
            new.append(l)
        else:
            assert "exec" not in t and not t.startswith("s_branch") and not (t.startswith("s_cbranch") and t not in ("s_cbranch_scc1 KA_END",)), t
            new.append(l)
    assert nb == 4
    out[iL:iE] = new
    i0 = out.index("KA_LOOP:")
    j = next(k for k in range(i0, i0+12) if st(out[k]) == "s_lshl_b32 s44, s45, 12")
    out[j:j] = [f"    s_cmp_eq_u32 s45, {DT}", "    s_cbranch_scc1 KA_DRY", "KA_DRY_BACK:"]
    iL = out.index("KA_LAST:")
    assert st(out[iL-1]) == "s_branch KA_LOOP"
    out[iL:iL] = ["KA_DRY_RET:", f"    s_mov_b32 s45, {DT}", "    s_mov_b64 exec, -1", "    s_branch KA_DRY_BACK",
                  "KA_DRY:", "    s_mov_b64 exec, 0"]
if any(a.startswith("dry=") for a in sys.argv): dry_patch()
kf = kernel_f()
out.append('.section .rodata,"a"')
for name, nv in ((MAIN, 128), (kf, 80)):
    out.append(".p2align 6")
    out.append(f".amdhsa_kernel {name}")
    out.append(f"  .amdhsa_next_free_vgpr {nv}")
    out.append("  .amdhsa_next_free_sgpr 102")
    out.append(f"  .amdhsa_accum_offset {nv}")
    out.append("  .amdhsa_group_segment_fixed_size 0")
    out.append("  .amdhsa_kernarg_size 96")
    out.append("  .amdhsa_user_sgpr_count 2")
    out.append("  .amdhsa_user_sgpr_kernarg_segment_ptr 1")
    out.append("  .amdhsa_system_sgpr_workgroup_id_x 1")
    out.append(".end_amdhsa_kernel")
OUTF = [a[4:] for a in sys.argv[1:] if a.startswith("out=")]
open(OUTF[0] if OUTF else "recurrent_scan__mha_block_cached__geglu_ffn__decode.s", "w").write("\n".join(out) + "\n")
```
